```python
import torch

def _softmax(x, axis=-1):
    return torch.softmax(x, dim=axis)

def _gelu(x):
    return torch.nn.functional.gelu(x, approximate='tanh')

def _silu(x):
    return torch.nn.functional.silu(x)

def _sigmoid(x):
    return torch.sigmoid(x)

def _layernorm(x, axis=-1, eps=1e-05):
    m = x.mean(dim=axis, keepdim=True)
    v = x.var(dim=axis, keepdim=True, unbiased=False)
    return (x - m) / torch.sqrt(v + eps)

def _scatter_add(tgt, idx, src, axis=0):
    return tgt.clone().index_add_(axis, idx, src)

def _segment_sum(src, seg, n):
    out = torch.zeros((n,) + src.shape[1:], dtype=src.dtype)
    return out.index_add_(0, seg, src)

def _pad(x, pw):
    flat = tuple((v for pair in reversed(pw) for v in pair))
    return torch.nn.functional.pad(x, flat)
kernel_name = 'parallel_sum__ssm_conv_s4d__mixer_gmlp__prompt'

def setup_inputs():

    _w = lambda a: (lambda t: t.to(torch.bfloat16) if t.is_floating_point() else t)(torch.as_tensor(a))

    def _A_setup():
        Bsz, L, D, N = (1, 2048, 448, 256)
        return {'u': _w((lambda *s: torch.randn(*s, dtype=torch.bfloat16) * 0.05)(Bsz, L, D)), 'log_A_real': _w((lambda *s: torch.randn(*s, dtype=torch.bfloat16) * 12.8)(D, N) * 0.5), 'A_imag': _w((lambda *s: torch.randn(*s, dtype=torch.bfloat16) * 0.1)(D, N) * 3.14), 'C_real': _w((lambda *s: torch.randn(*s, dtype=torch.bfloat16) * 3.2)(D, N) / N ** 0.5), 'C_imag': _w((lambda *s: torch.randn(*s, dtype=torch.bfloat16) * 3.2)(D, N) / N ** 0.5), 'log_dt': _w((lambda *s: torch.randn(*s, dtype=torch.bfloat16) * 0.1)(D) * 0.5 - 4.0), 'D_skip': _w((lambda *s: torch.randn(*s, dtype=torch.bfloat16) * 0.8)(D))}
    _A_in = _A_setup()

    def _B_setup():
        B, S, D, F = (1, 2048, 448, 1792)
        Fh = F // 2
        return {'x': _w((lambda *s: torch.randn(*s, dtype=torch.bfloat16) * 0.05)(B, S, D)), 'w_in': _w((lambda *s: torch.randn(*s, dtype=torch.bfloat16) * 0.4)(D, 2 * Fh)), 'w_sp': _w(0.01 * (lambda *s: torch.randn(*s, dtype=torch.bfloat16) * 0.4)(S, S)), 'b_sp': _w(1.0 + 0.01 * (lambda *s: torch.randn(*s, dtype=torch.bfloat16) * 0.05)(S)), 'w_out': _w((lambda *s: torch.randn(*s, dtype=torch.bfloat16) * 0.05)(Fh, D))}
    _B_in = _B_setup()
    return {'A_u': _A_in['u'], 'A_log_A_real': _A_in['log_A_real'], 'A_A_imag': _A_in['A_imag'], 'A_C_real': _A_in['C_real'], 'A_C_imag': _A_in['C_imag'], 'A_log_dt': _A_in['log_dt'], 'A_D_skip': _A_in['D_skip'], 'B_x': _B_in['x'], 'B_w_in': _B_in['w_in'], 'B_w_sp': _B_in['w_sp'], 'B_b_sp': _B_in['b_sp'], 'B_w_out': _B_in['w_out']}

def reference(A_u, A_log_A_real, A_A_imag, A_C_real, A_C_imag, A_log_dt, A_D_skip, B_x, B_w_in, B_w_sp, B_b_sp, B_w_out):

    def _A_ref(u, log_A_real, A_imag, C_real, C_imag, log_dt, D_skip):
        L = u.shape[1]
        dt = torch.exp(log_dt)
        A = -torch.exp(log_A_real) + 1j * A_imag
        C = (C_real + 1j * C_imag) * dt[:, None]
        pos = (lambda x, dt: x.to(dt))(torch.arange(L), log_dt.dtype)
        P = torch.exp((A * dt[:, None])[:, :, None] * pos[None, None, :])
        K = 2.0 * torch.einsum('dn,dnl->dl', C, P).real
        L2 = 2 * L
        u_t = (lambda x, *d: x.permute(*d))(u, 0, 2, 1)
        Kf = (lambda x, *a, **k: torch.fft.rfft(x.float(), *a, **k))(K, L2)
        Uf = (lambda x, *a, **k: torch.fft.rfft(x.float(), *a, **k))(u_t, L2)
        y = (lambda x, *a, **k: torch.fft.irfft(x, *a, **k).to(torch.bfloat16))(Uf * Kf[None, :, :], L2)[:, :, :L]
        y = (lambda x, *d: x.permute(*d))(y, 0, 2, 1)
        return y + u * D_skip[None, None, :]

    def _B_ref(x, w_in, w_sp, b_sp, w_out):
        B, S, D = x.shape
        F = w_in.shape[-1]
        Fh = F // 2
        z = _gelu(torch.einsum('bsd,df->bsf', x, w_in))
        z1 = z[..., :Fh].clone()
        z2 = _layernorm(z[..., Fh:], axis=-1)
        g = torch.einsum('ts,bsf->btf', w_sp, z2) + b_sp[None, :, None]
        return torch.einsum('bsf,fd->bsd', z1 * g, w_out)
    x = A_u
    xn = _layernorm(x, axis=-1)
    return x + _A_ref(xn, A_log_A_real, A_A_imag, A_C_real, A_C_imag, A_log_dt, A_D_skip) + _B_ref(xn, B_w_in, B_w_sp, B_b_sp, B_w_out)
```

```python
class Asm:
    def __init__(self):
        self.lines = []; self.launches = []; self.kds = []; self.nl = 0
    def __call__(self, s, *a):
        for l in s.strip("\n").split("\n"):
            self.lines.append("    " + l.strip())
    def label(self, l): self.lines.append(l + ":")
    def newlabel(self, p="L"):
        self.nl += 1; return f"{p}_{self.nl}"
    def comment(self, c): self.lines.append("    ; " + c)
    def begin_kernel(self, name):
        self.lines += [f".globl {name}", ".p2align 8", f".type {name},@function", f"{name}:"]
    def end_kernel(self, name, vgpr, sgpr=96, accum=None, extra=()):
        self.lines.append("    s_endpgm")
        if accum is None: accum = (vgpr + 3)//4*4
        self.kds.append((name, vgpr, sgpr, accum, extra))
    def launch(self, name, grid, block, lds):
        self.launches.append(f"; @launch kernel={name} grid=({grid},1,1) block=({block},1,1) lds={lds}")
    def text(self, header=""):
        o = [header.rstrip("\n")] if header else []
        o += self.launches
        o += ['.amdgcn_target "amdgcn-amd-amdhsa--gfx950"', ".text"]
        o += self.lines
        o += ['.section .rodata,"a"']
        for name, vgpr, sgpr, accum, extra in self.kds:
            o += [".p2align 6", f".amdhsa_kernel {name}", f"  .amdhsa_next_free_vgpr {vgpr}", f"  .amdhsa_next_free_sgpr {sgpr}",
                  f"  .amdhsa_accum_offset {accum}", "  .amdhsa_group_segment_fixed_size 0", "  .amdhsa_kernarg_size 120",
                  "  .amdhsa_user_sgpr_count 2", "  .amdhsa_user_sgpr_kernarg_segment_ptr 1", "  .amdhsa_system_sgpr_workgroup_id_x 1"]
            o += ["  " + e for e in extra]
            o += [".end_amdhsa_kernel"]
        return "\n".join(o) + "\n"
def v(i, n=1): return f"v{i}" if n == 1 else f"v[{i}:{i+n-1}]"
def s(i, n=1): return f"s{i}" if n == 1 else f"s[{i}:{i+n-1}]"
def a(i, n=1): return f"a{i}" if n == 1 else f"a[{i}:{i+n-1}]"
STAMP_OFF = 255*1024*1024
def stamp(A, kidx, slot, sws, stmp, vtmp, wgreg="s2"):
    A(f"s_memrealtime {s(stmp,2)}")
    A(f"s_lshl_b32 {s(stmp+2)}, {wgreg}, 6")
    A(f"s_add_u32 {s(stmp+2)}, {s(stmp+2)}, {STAMP_OFF + kidx*2048*64 + slot*8}")
    A(f"s_waitcnt lgkmcnt(0)")
    A(f"v_mov_b32 {v(vtmp)}, {s(stmp)}")
    A(f"v_mov_b32 {v(vtmp+1)}, {s(stmp+1)}")
    A(f"v_mov_b32 {v(vtmp+2)}, {s(stmp+2)}")
    A(f"global_store_dwordx2 {v(vtmp+2)}, {v(vtmp,2)}, {s(sws,2)}")

class Trk:
    def __init__(self, A, name, maxn):
        self.A = A; self.name = name; self.q = []; self.maxn = maxn
    def issue(self, tag): self.q.append(tag)
    def wait(self, tag):
        idx = max((i for i, t in enumerate(self.q) if t == tag), default=-1)
        if idx < 0: return
        n = len(self.q) - 1 - idx
        self.A(f"s_waitcnt {self.name}({min(n, self.maxn)})")
        self.q = self.q[idx+1:] if n <= self.maxn else self.q[len(self.q)-self.maxn:]
    def waitall(self):
        self.A(f"s_waitcnt {self.name}(0)"); self.q = []

WS_XNT = 0
WS_Z1F = 2*1024*1024
WS_Z2F = 6*1024*1024
WS_HF  = 10*1024*1024
WS_WOF = 14*1024*1024
WS_AT  = 15*1024*1024
WS_STAT= 17*1024*1024
WS_END = 18*1024*1024
def srd(A, d, base, nbytes, off=0):
    if off:
        A(f"s_add_u32 s{d}, s{base}, {off}\ns_addc_u32 s{d+1}, s{base+1}, 0")
    else:
        A(f"s_mov_b32 s{d}, s{base}\ns_mov_b32 s{d+1}, s{base+1}")
    A(f"s_mov_b32 s{d+2}, {nbytes}\ns_mov_b32 s{d+3}, 0x20000")
import struct
def f32(x): return "0x%08x" % struct.unpack("<I", struct.pack("<f", x))[0]
```

```python
from gen import *
import math
LOG2E = math.log2(math.e)
GC0 = -2*0.7978845608028654*LOG2E
GC1 = GC0*0.044715
def bf16r(A, dst, src):
    A(f"v_cvt_pk_bf16_f32 {v(dst)}, {v(src)}, {v(src)}\nv_lshlrev_b32 {v(dst)}, 16, {v(dst)}")

def gelu_block(A, regs, tmp, vC1, out_packed):
    n = len(regs)
    for i in range(0, n, 2):
        A(f"v_cvt_pk_bf16_f32 {v(out_packed[i//2])}, {v(regs[i])}, {v(regs[i+1])}")
    for i in range(0, n, 2):
        A(f"v_lshlrev_b32 {v(regs[i])}, 16, {v(out_packed[i//2])}")
        A(f"v_and_b32 {v(regs[i+1])}, 0xffff0000, {v(out_packed[i//2])}")
    for i in range(n): A(f"v_mul_f32 {v(tmp[i])}, {v(regs[i])}, {v(regs[i])}")
    for i in range(n): A(f"v_fmaak_f32 {v(tmp[i])}, {v(tmp[i])}, {v(vC1)}, {f32(GC0)}")
    for i in range(n): A(f"v_mul_f32 {v(tmp[i])}, {v(tmp[i])}, {v(regs[i])}")
    for i in range(n): A(f"v_exp_f32 {v(tmp[i])}, {v(tmp[i])}")
    for i in range(n): A(f"v_add_f32 {v(tmp[i])}, 1.0, {v(tmp[i])}")
    for i in range(n): A(f"v_rcp_f32 {v(tmp[i])}, {v(tmp[i])}")
    for i in range(n): A(f"v_mul_f32 {v(regs[i])}, {v(regs[i])}, {v(tmp[i])}")
    for i in range(0, n, 2):
        A(f"v_cvt_pk_bf16_f32 {v(out_packed[i//2])}, {v(regs[i])}, {v(regs[i+1])}")

def gen_k1(A, name, kidx, STAMPS=False):
    NG = 224; NPREP = 28
    XN = 65536
    ST = XN + 57344
    ST2 = ST + 2048
    LDS = ST2 + 512
    A.begin_kernel(name)
    A(f"s_cmp_ge_u32 s2, {NG+NPREP}\ns_cbranch_scc1 {name}_end")
    A("s_load_dwordx2 s[4:5], s[0:1], 0")
    A("s_load_dwordx2 s[6:7], s[0:1], 64")
    A("s_load_dwordx4 s[8:11], s[0:1], 104")
    A("s_load_dwordx2 s[12:13], s[0:1], 88")
    A("s_load_dwordx2 s[14:15], s[0:1], 72")
    A("v_and_b32 v1, 63, v0\nv_lshrrev_b32 v2, 6, v0")
    A("s_nop 0\nv_readfirstlane_b32 s3, v2")
    A("s_waitcnt lgkmcnt(0)")
    if STAMPS: stamp(A, kidx, 0, 10, 44, 148)
    A(f"s_cmp_ge_u32 s2, {NG}\ns_cbranch_scc1 {name}_prep")
    srd(A, 16, 4, 2048*896)
    srd(A, 20, 6, 448*3584)
    srd(A, 24, 10, WS_END)
    A(f"s_lshr_b32 s28, s2, 3\ns_mul_i32 s29, s28, 37\ns_lshr_b32 s29, s29, 8")
    A("s_mul_i32 s30, s29, 7\ns_sub_u32 s31, s28, s30")
    A("s_and_b32 s30, s2, 7\ns_lshl_b32 s30, s30, 2\ns_add_u32 s30, s30, s29")
    vm = Trk(A, "vmcnt", 63); lg = Trk(A, "lgkmcnt", 15)
    A("v_lshrrev_b32 v3, 3, v0\nv_and_b32 v4, 7, v0")
    A(f"s_mul_i32 s32, s30, {64*896}")
    A(f"v_mul_u32_u24 v5, 896, v3\nv_lshl_add_u32 v5, v4, 4, v5")
    XR = 64
    for i in range(7):
        A(f"buffer_load_dwordx4 {v(XR+4*i,4)}, v5, s[16:19], s32 offen offset:{i*128}"); vm.issue("x")
    A("v_lshrrev_b32 v6, 5, v1\nv_and_b32 v7, 31, v1")
    A("v_lshl_add_u32 v8, v2, 2, v6")
    for e in range(2):
        d = 10+e
        A(f"v_add_u32 v9, {2*e}, v8")
        A(f"v_and_b32 v12, 7, v9\nv_lshlrev_b32 v12, 1, v12\nv_xor_b32 v12, v12, v7")
        A(f"v_and_b32 v13, 15, v12\nv_lshlrev_b32 v13, 4, v13")
        A(f"v_lshrrev_b32 v12, 4, v12\nv_mul_u32_u24 v12, 1792, v12")
        A(f"v_mul_u32_u24 v{d}, 3584, v9\nv_add3_u32 v{d}, v{d}, v12, v13")
    A(f"s_lshl_b32 s33, s31, 8")
    A(f"s_lshl_b32 s34, s3, 11")
    def dma(st):
        A(f"s_add_u32 m0, s34, {(st%4)*16384}\ns_add_u32 s35, s33, {st*32*3584}")
        A(f"buffer_load_dwordx4 v10, s[20:23], s35 offen lds"); vm.issue(f"w{st}")
        A(f"s_add_u32 m0, m0, 1024\ns_nop 0")
        A(f"buffer_load_dwordx4 v11, s[20:23], s35 offen lds"); vm.issue(f"w{st}")
    for st in range(4): dma(st)
    XF = 96
    vm.wait("x")
    for i in range(28):
        A(f"v_lshlrev_b32 {v(XF+2*i)}, 16, {v(XR+i)}\nv_and_b32 {v(XF+2*i+1)}, 0xffff0000, {v(XR+i)}")
    for c in range(4): A(f"v_pk_add_f32 {v(16+2*c,2)}, {v(XF+2*c,2)}, {v(XF+8+2*c,2)}")
    for i in range(8, 28): A(f"v_pk_add_f32 {v(16+2*(i%4),2)}, {v(16+2*(i%4),2)}, {v(XF+2*i,2)}")
    A("v_pk_add_f32 v[16:17], v[16:17], v[18:19]\nv_pk_add_f32 v[20:21], v[20:21], v[22:23]\nv_pk_add_f32 v[16:17], v[16:17], v[20:21]\nv_add_f32 v16, v16, v17")
    def red8(r):
        A(f"s_nop 1\nv_add_f32_dpp {v(r)}, {v(r)}, {v(r)} quad_perm:[1,0,3,2] row_mask:0xf bank_mask:0xf")
        A(f"s_nop 1\nv_add_f32_dpp {v(r)}, {v(r)}, {v(r)} quad_perm:[2,3,0,1] row_mask:0xf bank_mask:0xf")
        A(f"s_nop 1\nv_add_f32_dpp {v(r)}, {v(r)}, {v(r)} row_half_mirror row_mask:0xf bank_mask:0xf")
    red8(16)
    A(f"v_mul_f32 v16, {f32(1/448)}, v16\nv_mov_b32 v17, v16")
    for i in range(28):
        t = 24+2*(i%4)
        A(f"v_pk_add_f32 {v(t,2)}, {v(XF+2*i,2)}, v[16:17] neg_lo:[0,1] neg_hi:[0,1]")
        if i < 4: A(f"v_pk_mul_f32 {v(32+2*i,2)}, {v(t,2)}, {v(t,2)}")
        else: A(f"v_pk_fma_f32 {v(32+2*(i%4),2)}, {v(t,2)}, {v(t,2)}, {v(32+2*(i%4),2)}")
    A("v_pk_add_f32 v[32:33], v[32:33], v[34:35]\nv_pk_add_f32 v[36:37], v[36:37], v[38:39]\nv_pk_add_f32 v[32:33], v[32:33], v[36:37]\nv_add_f32 v32, v32, v33")
    red8(32)
    A(f"v_mul_f32 v32, {f32(1/448)}, v32")
    bf16r(A, 32, 32)
    A(f"v_add_f32 v32, {f32(1e-5)}, v32"); bf16r(A, 32, 32)
    A("v_sqrt_f32 v32, v32\ns_nop 0"); bf16r(A, 32, 32)
    A("v_rcp_f32 v18, v32")
    bf16r(A, 16, 16)
    A("v_mov_b32 v17, v16")
    A("v_fma_f32 v19, -v32, v18, 1.0\nv_fma_f32 v18, v19, v18, v18\nv_mov_b32 v19, v18")
    A("v_lshrrev_b32 v20, 2, v4\nv_lshlrev_b32 v20, 2, v20\nv_and_b32 v21, 1, v4\nv_lshl_add_u32 v20, v21, 1, v20")
    A("v_bfe_u32 v21, v3, 1, 3\nv_xor_b32 v22, v20, v21\nv_xor_b32 v23, 1, v22")
    A("v_bfe_u32 v21, v4, 1, 1\nv_lshlrev_b32 v21, 3, v21")
    A(f"v_mul_u32_u24 v24, 896, v3\nv_add3_u32 v24, v24, v21, {XN}" if False else f"v_mul_u32_u24 v24, 896, v3\nv_add_u32 v24, v24, v21\nv_add_u32 v24, {XN}, v24")
    A("v_lshl_add_u32 v22, v22, 4, v24\nv_lshl_add_u32 v23, v23, 4, v24")
    for i in range(28):
        p = XF+2*i
        A(f"v_pk_add_f32 {v(p,2)}, {v(p,2)}, v[16:17] neg_lo:[0,1] neg_hi:[0,1]")
        A(f"v_cvt_pk_bf16_f32 {v(XR+i)}, {v(p)}, {v(p+1)}")
        A(f"v_lshlrev_b32 {v(p)}, 16, {v(XR+i)}\nv_and_b32 {v(p+1)}, 0xffff0000, {v(XR+i)}")
        A(f"v_pk_mul_f32 {v(p,2)}, {v(p,2)}, v[18:19]")
        A(f"v_cvt_pk_bf16_f32 {v(XR+i)}, {v(p)}, {v(p+1)}")
        if i % 4 == 3:
            j = i//4
            A(f"ds_write_b64 v22, {v(XR+4*j,2)} offset:{j*128}\nds_write_b64 v23, {v(XR+4*j+2,2)} offset:{j*128}")
    A("v_and_b32 v3, 15, v1\nv_lshrrev_b32 v4, 4, v1")
    A("s_lshr_b32 s36, s3, 2\ns_and_b32 s37, s3, 3")
    A("s_lshl_b32 s38, s36, 5\nv_add_u32 v5, s38, v3")
    AA = 12
    for mb in range(2):
        A(f"v_add_u32 v6, {16*mb}, v5\nv_bfe_u32 v7, v6, 1, 3\nv_xor_b32 v7, v7, v4")
        A(f"v_mul_u32_u24 v6, 896, v6\nv_add_u32 v6, {XN}, v6\nv_lshl_add_u32 {v(AA+2*mb)}, v7, 4, v6")
        A(f"v_xor_b32 v7, 4, v7\nv_lshl_add_u32 {v(AA+2*mb+1)}, v7, 4, v6")
    A("v_lshrrev_b32 v6, 2, v1")
    A("v_and_b32 v7, 7, v6\nv_lshlrev_b32 v7, 1, v7")
    A("v_bfe_u32 v8, v1, 1, 1\ns_lshl_b32 s38, s37, 2\nv_add_u32 v8, s38, v8")
    A("v_xor_b32 v8, v8, v7\nv_and_b32 v9, 1, v1\nv_lshlrev_b32 v9, 3, v9\nv_lshl_add_u32 v9, v6, 9, v9")
    A("v_lshl_add_u32 v16, v8, 4, v9\nv_xor_b32 v17, 32, v16")
    A("v_bfe_u32 v6, v1, 2, 2\nv_lshl_add_u32 v6, v4, 3, v6\ns_lshl_b32 s38, s36, 5\nv_add_u32 v6, s38, v6")
    A("v_and_b32 v7, 3, v1\ns_lshr_b32 s38, s37, 1\ns_lshl_b32 s38, s38, 2\nv_add_u32 v7, s38, v7")
    A(f"s_and_b32 s38, s37, 1\ns_lshl_b32 s38, s38, 3\ns_lshl_b32 s39, s31, 7\ns_add_u32 s38, s38, s39\ns_add_u32 s38, s38, {XN}")
    for h in range(2):
        A(f"v_add_u32 v8, {4*h}, v6\nv_bfe_u32 v9, v8, 1, 3\nv_xor_b32 v9, v9, v7\nv_mul_u32_u24 v8, 896, v8\nv_lshl_add_u32 v8, v9, 4, v8\nv_add_u32 {v(18+h)}, s38, v8")
    A("s_lshl_b32 s38, s31, 6\ns_lshl_b32 s39, s37, 4\ns_add_u32 s38, s38, s39\nv_add_u32 v8, s38, v3\nv_lshlrev_b32 v8, 12, v8")
    A("s_lshl_b32 s38, s30, 7\ns_lshl_b32 s39, s36, 6\ns_add_u32 s38, s38, s39\nv_lshl_add_u32 v8, v4, 4, v8\nv_add_u32 v20, s38, v8")
    ACC = 32
    for i in range(32): A(f"v_mov_b32 {v(ACC+i)}, 0")
    vm.wait("w0")
    A("s_waitcnt lgkmcnt(0)\ns_barrier")
    A("ds_read_b64_tr_b16 v[24:25], v18\nds_read_b64_tr_b16 v[26:27], v19")
    FB = 64
    def frags(ks):
        b = FB + (ks % 2)*24
        for mb in range(2):
            A(f"ds_read_b128 {v(b+4*mb,4)}, {v(AA+2*mb+(ks%2))} offset:{(ks//2)*128}"); lg.issue(f"f{ks}")
        for zh in range(2):
            for bi in range(2):
                for h in range(2):
                    A(f"ds_read_b64_tr_b16 {v(b+8+(zh*2+bi)*4+2*h,2)}, {v(16+bi)} offset:{(ks%4)*16384+zh*256+h*8192}"); lg.issue(f"f{ks}")
    lg.issue("xnt"); lg.issue("xnt")
    frags(0)
    lg.wait("xnt")
    A(f"buffer_store_dwordx4 v[24:27], v20, s[24:27], 0 offen"); vm.issue("xnt")
    for ks in range(14):
        if ks+1 < 14: vm.wait(f"w{ks+1}")
        lg.waitall()
        if ks+1 < 14: A("s_barrier")
        if ks+4 < 14: dma(ks+4)
        if ks+1 < 14: frags(ks+1)
        b = FB + (ks % 2)*24
        for mb in range(2):
            for bi in range(2):
                A(f"v_mfma_f32_16x16x32_bf16 {v(ACC+16+(mb*2+bi)*4,4)}, {v(b+4*mb,4)}, {v(b+8+(2+bi)*4,4)}, {v(ACC+16+(mb*2+bi)*4,4)}")
                A(f"v_mfma_f32_16x16x32_bf16 {v(ACC+(mb*2+bi)*4,4)}, {v(b+8+bi*4,4)}, {v(b+4*mb,4)}, {v(ACC+(mb*2+bi)*4,4)}")
    if STAMPS: stamp(A, kidx, 2, 10, 44, 148)
    A(f"v_mov_b32 v31, {f32(GC1)}\ns_nop 7")
    Z2 = list(range(ACC+16, ACC+32)); Z1 = list(range(ACC, ACC+16))
    TMP = list(range(64, 80)); P2 = list(range(80, 88)); P1 = list(range(88, 96))
    gelu_block(A, Z2, TMP, 31, P2)
    for i in range(0, 16, 2):
        A(f"v_lshlrev_b32 {v(Z2[i])}, 16, {v(P2[i//2])}\nv_and_b32 {v(Z2[i+1])}, 0xffff0000, {v(P2[i//2])}")
    for mb in range(2):
        for i in range(4):
            a0 = Z2[(mb*2)*4+i]; a1 = Z2[(mb*2+1)*4+i]
            A(f"v_add_f32 {v(96+mb*4+i)}, {v(a0)}, {v(a1)}\nv_mul_f32 {v(104+mb*4+i)}, {v(a0)}, {v(a0)}\nv_fmac_f32 {v(104+mb*4+i)}, {v(a1)}, {v(a1)}")
    for sh in (1, 2, 4, 8):
        for r in range(96, 112):
            A(f"v_add_f32_dpp {v(r)}, {v(r)}, {v(r)} row_ror:{sh} row_mask:0xf bank_mask:0xf")
    A(f"s_lshl_b32 s38, s37, 9\ns_lshl_b32 s39, s36, 8\ns_add_u32 s38, s38, s39\ns_add_u32 s38, s38, {ST}\nv_lshlrev_b32 v6, 5, v4\nv_add_u32 v6, s38, v6")
    A("v_cmp_eq_u32 vcc, 0, v3\ns_and_saveexec_b64 s[40:41], vcc")
    for mb in range(2):
        for i in range(4):
            A(f"ds_write2_b32 v6, {v(96+mb*4+i)}, {v(104+mb*4+i)} offset0:{mb*32+i*2} offset1:{mb*32+i*2+1}")
    A("s_mov_b64 exec, s[40:41]\ns_waitcnt lgkmcnt(0)\ns_barrier")
    A(f"s_cmp_lg_u32 s3, 0\ns_cbranch_scc1 {name}_nopub")
    A(f"v_lshlrev_b32 v6, 3, v1\nv_add_u32 v7, {ST}, v6")
    for wn in range(4): A(f"ds_read_b64 {v(96+2*wn,2)}, v7 offset:{wn*512}")
    A(f"s_mul_i32 s38, s30, {7*512}\ns_lshl_b32 s39, s31, 9\ns_add_u32 s38, s38, s39\ns_add_u32 s38, s38, {WS_STAT}")
    A("s_waitcnt lgkmcnt(0)\nv_pk_add_f32 v[96:97], v[96:97], v[98:99]\nv_pk_add_f32 v[100:101], v[100:101], v[102:103]\nv_pk_add_f32 v[96:97], v[96:97], v[100:101]")
    A("buffer_store_dwordx2 v[96:97], v6, s[24:27], s38 offen sc1")
    A("s_waitcnt vmcnt(0)")
    A("s_lshl_b32 s38, s30, 2\nv_mov_b32 v6, s38\nv_mov_b32 v7, 1\nv_cmp_eq_u32 vcc, 0, v1\ns_and_saveexec_b64 s[40:41], vcc")
    A("global_atomic_add v6, v7, s[8:9] sc1\ns_mov_b64 exec, s[40:41]")
    A.label(f"{name}_nopub")
    gelu_block(A, Z1, TMP, 31, P1)
    A(f"s_lshl_b32 s38, s30, 2\ns_lshl_b32 s39, s36, 1\ns_add_u32 s38, s38, s39\ns_mul_i32 s38, s38, 56\ns_lshl_b32 s39, s31, 3\ns_add_u32 s38, s38, s39\ns_lshl_b32 s39, s37, 1\ns_add_u32 s38, s38, s39\ns_lshl_b32 s38, s38, 9\ns_add_u32 s38, s38, {WS_Z1F}")
    A(f"s_add_u32 s39, s38, {56*512}\nv_lshlrev_b32 v6, 3, v1")
    for mb in range(2):
        for bi in range(2):
            A(f"buffer_store_dwordx2 {v(P1[(mb*2+bi)*2],2)}, v6, s[24:27], {'s39' if mb else 's38'} offen offset:{bi*512}")
    A(f"s_cmp_lg_u32 s3, 0\ns_cbranch_scc1 {name}_nopoll")
    A(f"s_lshl_b32 s38, s30, 2\nv_mov_b32 v6, s38\ns_mov_b32 s42, 0")
    A.label(f"{name}_poll")
    A("global_load_dword v7, v6, s[8:9] sc1\ns_waitcnt vmcnt(0)\nv_readfirstlane_b32 s39, v7")
    A(f"s_add_u32 s42, s42, 1\ns_cmp_gt_u32 s42, 200000\ns_cbranch_scc1 {name}_polled")
    A(f"s_cmp_ge_u32 s39, 7\ns_cbranch_scc1 {name}_polled\ns_sleep 1\ns_branch {name}_poll")
    A.label(f"{name}_polled")
    A(f"v_lshlrev_b32 v6, 3, v1\ns_mul_i32 s38, s30, {7*512}\ns_add_u32 s38, s38, {WS_STAT}")
    for c in range(7): A(f"buffer_load_dwordx2 {v(96+2*c,2)}, v6, s[24:27], s38 offen offset:{c*512} sc1")
    A("s_waitcnt vmcnt(0)")
    for c in range(1, 7): A(f"v_pk_add_f32 v[96:97], v[96:97], {v(96+2*c,2)}")
    A(f"v_mul_f32 v96, {f32(1/896)}, v96\nv_mul_f32 v97, {f32(1/896)}, v97\nv_fma_f32 v97, -v96, v96, v97\nv_max_f32 v97, 0, v97")
    bf16r(A, 97, 97); A(f"v_add_f32 v97, {f32(1e-5)}, v97"); bf16r(A, 97, 97)
    A("v_sqrt_f32 v97, v97\ns_nop 0"); bf16r(A, 97, 97)
    A("v_rcp_f32 v98, v97"); bf16r(A, 96, 96)
    A("v_fma_f32 v99, -v97, v98, 1.0\nv_fma_f32 v97, v99, v98, v98")
    A(f"v_add_u32 v6, {ST2}, v6\nds_write_b64 v6, v[96:97]\ns_waitcnt lgkmcnt(0)")
    A.label(f"{name}_nopoll")
    A("s_barrier")
    A(f"s_lshl_b32 s38, s36, 8\ns_add_u32 s38, s38, {ST2}\nv_lshlrev_b32 v6, 5, v4\nv_add_u32 v6, s38, v6")
    for mb in range(2):
        A(f"ds_read_b128 {v(96+mb*8,4)}, v6 offset:{mb*128}\nds_read_b128 {v(100+mb*8,4)}, v6 offset:{mb*128+16}")
    A("s_waitcnt lgkmcnt(0)")
    for mb in range(2):
        for bi in range(2):
            z = Z2[(mb*2+bi)*4:(mb*2+bi)*4+4]; p = P2[(mb*2+bi)*2:(mb*2+bi)*2+2]
            for i in range(4): A(f"v_sub_f32 {v(z[i])}, {v(z[i])}, {v(96+mb*8+2*i)}")
            for h in range(2): A(f"v_cvt_pk_bf16_f32 {v(p[h])}, {v(z[2*h])}, {v(z[2*h+1])}")
            for h in range(2): A(f"v_lshlrev_b32 {v(z[2*h])}, 16, {v(p[h])}\nv_and_b32 {v(z[2*h+1])}, 0xffff0000, {v(p[h])}")
            for i in range(4): A(f"v_mul_f32 {v(z[i])}, {v(z[i])}, {v(96+mb*8+2*i+1)}")
            for h in range(2): A(f"v_cvt_pk_bf16_f32 {v(64+bi*4+mb*2+h)}, {v(z[2*h])}, {v(z[2*h+1])}")
    A("s_nop 1")
    for bi in range(2):
        for h in range(2):
            X = 64+bi*4+h; Y = 64+bi*4+2+h
            A(f"v_permlane32_swap_b32 {v(X)}, {v(Y)}")
    A("s_nop 1")
    for bi in range(2):
        for h in range(2):
            X = 64+bi*4+h; Y = 64+bi*4+2+h
            A(f"v_permlane16_swap_b32 {v(X)}, {v(Y)}")
    A(f"s_lshl_b32 s38, s31, 2\ns_add_u32 s38, s38, s37\ns_lshl_b32 s38, s38, 6\ns_lshl_b32 s39, s30, 1\ns_add_u32 s38, s38, s39\ns_add_u32 s38, s38, s36\ns_lshl_b32 s38, s38, 11\ns_add_u32 s38, s38, {WS_Z2F}")
    A("v_lshlrev_b32 v6, 4, v1\ns_nop 0")
    for bi in range(2):
        A(f"buffer_store_dwordx4 {v(64+bi*4,4)}, v6, s[24:27], s38 offen offset:{bi*1024}")
    if STAMPS:
        A("s_waitcnt vmcnt(0)"); stamp(A, kidx, 1, 10, 44, 148)
    A("s_endpgm")
    A.label(f"{name}_prep")
    srd(A, 16, 12, 896*896)
    srd(A, 24, 10, WS_END)
    A(f"s_sub_u32 s30, s2, {NG}\ns_mul_i32 s31, s30, {32*896}\nv_lshlrev_b32 v3, 4, v0")
    for i in range(4):
        if i == 3: A("v_cmp_gt_u32 vcc, 256, v0\ns_and_saveexec_b64 s[40:41], vcc")
        A(f"s_add_u32 s32, s31, {i*8192}\nbuffer_load_dwordx4 {v(8+4*i,4)}, v3, s[16:19], s32 offen")
    A("s_waitcnt vmcnt(0)\nds_write_b128 v3, v[20:23] offset:24576\ns_mov_b64 exec, s[40:41]")
    for i in range(3): A(f"ds_write_b128 v3, {v(8+4*i,4)} offset:{i*8192}")
    A("s_waitcnt lgkmcnt(0)\ns_barrier")
    A("v_lshrrev_b32 v4, 2, v1\nv_mul_u32_u24 v4, 896, v4\nv_and_b32 v5, 3, v1\nv_lshl_add_u32 v4, v5, 5, v4\ns_lshr_b32 s32, s3, 2\ns_lshl_b32 s32, s32, 7\ns_and_b32 s33, s3, 3\ns_lshl_b32 s33, s33, 3\ns_add_u32 s32, s32, s33\nv_add_u32 v4, s32, v4")
    A(f"v_lshlrev_b32 v5, 4, v1\ns_mul_i32 s33, s3, {28*1024}\ns_lshl_b32 s34, s30, 10\ns_add_u32 s33, s33, s34\ns_add_u32 s33, s33, {WS_WOF}")
    for i in range(4):
        if i == 3: A(f"s_cmp_ge_u32 s3, 4\ns_cbranch_scc1 {name}_end")
        A(f"ds_read_b64_tr_b16 {v(8+4*i,2)}, v4 offset:{i*256}\nds_read_b64_tr_b16 {v(10+4*i,2)}, v4 offset:{i*256+16*896}")
        A(f"s_add_u32 s34, s33, {i*8*28*1024}\ns_waitcnt lgkmcnt(0)\nbuffer_store_dwordx4 {v(8+4*i,4)}, v5, s[24:27], s34 offen")
    A.label(f"{name}_end")
    A.end_kernel(name, 152, sgpr=64)
    A.launch(name, NG+NPREP, 512, LDS)
```

```python
from gen import *
import os
NG = 224
def gen_gemm2(A, name, kidx, STAMPS):
    N = 6
    srd(A, 16, 4, 2048*4096)
    srd(A, 20, 6, 4096)
    srd(A, 24, 10, WS_END)
    vm = Trk(A, "vmcnt", 63); lg = Trk(A, "lgkmcnt", 15)
    A("v_and_b32 v3, 15, v1\nv_lshrrev_b32 v4, 4, v1")
    A("v_lshrrev_b32 v5, 3, v1\ns_lshl_b32 s32, s3, 4\nv_add_u32 v5, s32, v5\nv_and_b32 v6, 7, v1")
    for e in range(2):
        A(f"v_add_u32 v7, {8*e}, v5\nv_bfe_u32 v8, v7, 1, 3\nv_xor_b32 v8, v8, v6\nv_lshlrev_b32 v7, 12, v7\nv_lshl_add_u32 {v(10+e)}, v8, 4, v7")
    A("s_lshl_b32 s33, s30, 18")
    A("s_lshl_b32 s34, s3, 11")
    A(f"s_lshl_b32 s35, s31, 2\ns_add_u32 s35, s35, s3\ns_lshl_b32 s36, s35, 17\ns_add_u32 s36, s36, {WS_Z2F}\nv_lshlrev_b32 v9, 4, v1")
    ACC = 16; FB = 48; ZB = 112; Z1 = 208; BS = 224
    def dma(st):
        A(f"s_add_u32 m0, s34, {(st%N)*8192}\ns_add_u32 s37, s33, {st*128}")
        A(f"buffer_load_dwordx4 v10, s[16:19], s37 offen lds"); vm.issue(f"w{st}")
        A(f"s_add_u32 m0, m0, 1024\ns_nop 0")
        A(f"buffer_load_dwordx4 v11, s[16:19], s37 offen lds"); vm.issue(f"w{st}")
    def zl(st):
        L = [f"s_add_u32 s38, s36, {st*4096}"]
        for j in range(4):
            L.append((f"buffer_load_dwordx4 {v(ZB+(st%N)*16+4*j,4)}, v9, s[24:27], s38 offen offset:{j*1024}", f"z{st}"))
        return L
    def emit(L):
        for x in L:
            if isinstance(x, tuple): A(x[0]); vm.issue(x[1])
            else: A(x)
    for st in range(N): dma(st); emit(zl(st))
    A("v_lshrrev_b32 v5, 1, v3\nv_xor_b32 v5, v5, v4\nv_lshlrev_b32 v6, 7, v3\nv_lshl_add_u32 v12, v5, 4, v6\nv_xor_b32 v13, 64, v12")
    for i in range(32): A(f"v_mov_b32 {v(ACC+i)}, 0")
    def frags(st):
        b = FB + (st % 2)*32
        for p in range(2):
            for tb in range(4):
                A(f"ds_read_b128 {v(b+(p*4+tb)*4,4)}, {v(12+p)} offset:{(st%N)*8192+tb*2048}"); lg.issue(f"f{st}")
    vm.wait("w0"); A("s_barrier"); frags(0)
    for st in range(32):
        if st+1 < 32: vm.wait(f"w{st+1}")
        else: vm.wait(f"z{st}")
        lg.waitall()
        if st+1 < 32: A("s_barrier")
        if st+N < 32: dma(st+N)
        if st+1 < 32: frags(st+1)
        b = FB + (st % 2)*32; zb = ZB + (st % N)*16
        for p in range(2):
            for tb in range(4):
                for bi in range(2):
                    A(f"v_mfma_f32_16x16x32_bf16 {v(ACC+(bi*4+tb)*4,4)}, {v(zb+(p*2+bi)*4,4)}, {v(b+(p*4+tb)*4,4)}, {v(ACC+(bi*4+tb)*4,4)}")
        if st+N < 32: emit(zl(st+N))
        if st == 32-N:
            A(f"s_lshl_b32 s39, s30, 2\ns_mul_i32 s39, s39, 56\ns_lshl_b32 s40, s35, 1\ns_add_u32 s39, s39, s40\ns_lshl_b32 s39, s39, 9\ns_add_u32 s39, s39, {WS_Z1F}\nv_lshlrev_b32 v5, 3, v1")
            for tb in range(4):
                A(f"s_add_u32 s40, s39, {tb*56*512}")
                for bi in range(2):
                    A(f"buffer_load_dwordx2 {v(Z1+(tb*2+bi)*2,2)}, v5, s[24:27], s40 offen offset:{bi*512}"); vm.issue("e")
            A("s_lshl_b32 s40, s30, 7\nv_lshlrev_b32 v6, 1, v3")
            for tb in range(4):
                A(f"buffer_load_ushort {v(BS+tb)}, v6, s[20:23], s40 offen offset:{tb*32}"); vm.issue("e")
    if STAMPS: stamp(A, kidx, 2, 10, 44, 240)
    vm.waitall()
    A(f"s_lshl_b32 s39, s30, 2\ns_mul_i32 s39, s39, 28\ns_add_u32 s39, s39, s35\ns_lshl_b32 s39, s39, 10\ns_add_u32 s39, s39, {WS_HF}")
    for tb in range(4): A(f"v_lshlrev_b32 {v(BS+tb)}, 16, {v(BS+tb)}")
    A("s_nop 4")
    T = FB
    for tb in range(4):
        for bi in range(2):
            ac = ACC+(bi*4+tb)*4; z = Z1+(tb*2+bi)*2; t = T+(tb*2+bi)*6
            for h in range(2): A(f"v_cvt_pk_bf16_f32 {v(t+h)}, {v(ac+2*h)}, {v(ac+2*h+1)}")
            for h in range(2): A(f"v_lshlrev_b32 {v(ac+2*h)}, 16, {v(t+h)}\nv_and_b32 {v(ac+2*h+1)}, 0xffff0000, {v(t+h)}")
            for i in range(4): A(f"v_add_f32 {v(ac+i)}, {v(ac+i)}, {v(BS+tb)}")
            for h in range(2): A(f"v_cvt_pk_bf16_f32 {v(t+h)}, {v(ac+2*h)}, {v(ac+2*h+1)}")
            for h in range(2): A(f"v_lshlrev_b32 {v(ac+2*h)}, 16, {v(t+h)}\nv_and_b32 {v(ac+2*h+1)}, 0xffff0000, {v(t+h)}")
            for h in range(2): A(f"v_lshlrev_b32 {v(t+2+2*h)}, 16, {v(z+h)}\nv_and_b32 {v(t+3+2*h)}, 0xffff0000, {v(z+h)}")
            for i in range(4): A(f"v_mul_f32 {v(ac+i)}, {v(ac+i)}, {v(t+2+i)}")
            for h in range(2): A(f"v_cvt_pk_bf16_f32 {v(z+h)}, {v(ac+2*h)}, {v(ac+2*h+1)}")
        A(f"s_add_u32 s40, s39, {tb*28*1024}")
        A(f"buffer_store_dwordx4 {v(Z1+tb*4,4)}, v9, s[24:27], s40 offen")
    if STAMPS:
        A("s_waitcnt vmcnt(0)"); stamp(A, kidx, 1, 10, 44, 240)
    A("s_endpgm")

def gen_k2(A, name, kidx, STAMPS=False):
    SSM = "A" in os.environ.get("PARTS", "")
    NS = 224 if SSM else 0
    A.begin_kernel(name)
    A(f"s_cmp_ge_u32 s2, {NG+NS}\ns_cbranch_scc1 {name}_end")
    A("s_load_dwordx4 s[4:7], s[0:1], 72")
    A("s_load_dwordx2 s[10:11], s[0:1], 112")
    A("v_and_b32 v1, 63, v0\nv_lshrrev_b32 v2, 6, v0")
    A("s_nop 0\nv_readfirstlane_b32 s3, v2")
    if SSM: A(f"s_cmp_ge_u32 s2, {NG}\ns_cbranch_scc1 {name}_ssm")
    A(f"s_lshr_b32 s28, s2, 3\ns_mul_i32 s29, s28, 37\ns_lshr_b32 s29, s29, 8")
    A("s_mul_i32 s30, s29, 7\ns_sub_u32 s31, s28, s30")
    A("s_and_b32 s30, s2, 7\ns_lshl_b32 s30, s30, 2\ns_add_u32 s30, s30, s29")
    A("s_waitcnt lgkmcnt(0)")
    if STAMPS: stamp(A, kidx, 0, 10, 44, 240)
    gen_gemm2(A, name, kidx, STAMPS)
    lds = 6*8192
    if SSM:
        import ssm
        A.label(f"{name}_ssm")
        lds = max(lds, ssm.gen_ssm(A, name, kidx, STAMPS, NG))
    A.label(f"{name}_end")
    A.end_kernel(name, 244, sgpr=96)
    A.launch(name, NG+NS, 256, lds)
```

```python
from gen import *
import os
def gen_k3(A, name, kidx, STAMPS=False):
    SSM = "A" in os.environ.get("PARTS", "")
    NG = 224
    RED = 8192
    A.begin_kernel(name)
    A(f"s_cmp_ge_u32 s2, {NG}\ns_cbranch_scc1 {name}_end")
    A("s_load_dwordx2 s[4:5], s[0:1], 0")
    A("s_load_dwordx2 s[6:7], s[0:1], 96")
    A("s_load_dwordx2 s[10:11], s[0:1], 112")
    A("v_and_b32 v1, 63, v0\nv_lshrrev_b32 v2, 6, v0")
    A("s_nop 0\nv_readfirstlane_b32 s3, v2")
    A(f"s_lshr_b32 s28, s2, 3\ns_mul_i32 s29, s28, 37\ns_lshr_b32 s29, s29, 8")
    A("s_mul_i32 s30, s29, 7\ns_sub_u32 s31, s28, s30")
    A("s_and_b32 s30, s2, 7\ns_lshl_b32 s30, s30, 2\ns_add_u32 s30, s30, s29")
    A("v_lshlrev_b32 v9, 4, v1\nv_and_b32 v3, 15, v1\nv_lshrrev_b32 v4, 4, v1")
    A(f"s_mul_i32 s32, s30, {4*28}\ns_mul_i32 s33, s3, 7\ns_add_u32 s32, s32, s33\ns_lshl_b32 s32, s32, 10\ns_add_u32 s32, s32, {WS_HF}")
    A(f"s_mul_i32 s34, s31, {4*28}\ns_add_u32 s34, s34, s33\ns_lshl_b32 s34, s34, 10\ns_add_u32 s34, s34, {WS_WOF}")
    A("s_waitcnt lgkmcnt(0)")
    if STAMPS: stamp(A, kidx, 0, 10, 44, 12)
    srd(A, 16, 4, 2048*896); srd(A, 20, 6, 2048*896); srd(A, 24, 10, WS_END)
    vm = Trk(A, "vmcnt", 63)
    for b in range(4):
        A(f"s_add_u32 s{48+b}, s32, {b*28*1024}\ns_add_u32 s{52+b}, s34, {b*28*1024}")
        A(f"s_add_u32 s{56+b}, s32, {b*28*1024+4096}\ns_add_u32 s{60+b}, s34, {b*28*1024+4096}")
    FR = 24
    for ks in range(7):
        for b in range(4):
            A(f"buffer_load_dwordx4 {v(FR+ks*32+16+b*4,4)}, v9, s[24:27], s{(52 if ks<4 else 60)+b} offen offset:{(ks%4)*1024}"); vm.issue(f"k{ks}")
            A(f"buffer_load_dwordx4 {v(FR+ks*32+b*4,4)}, v9, s[24:27], s{(48 if ks<4 else 56)+b} offen offset:{(ks%4)*1024}"); vm.issue(f"k{ks}")
    A(f"s_lshl_b32 s36, s30, 6\ns_lshl_b32 s37, s3, 4\ns_add_u32 s36, s36, s37\ns_mul_i32 s36, s36, 896\ns_lshl_b32 s37, s31, 7\ns_add_u32 s36, s36, s37")
    A("v_mul_u32_u24 v5, 896, v3\nv_lshl_add_u32 v5, v4, 5, v5")
    A("buffer_load_dwordx4 v[16:19], v5, s[16:19], s36 offen"); vm.issue("x")
    A("buffer_load_dwordx4 v[20:23], v5, s[16:19], s36 offen offset:16"); vm.issue("x")
    if SSM:
        A(f"v_lshrrev_b32 v6, 3, v1\nv_and_b32 v7, 7, v1\nv_lshlrev_b32 v6, 12, v6\nv_lshl_add_u32 v6, v7, 4, v6")
        A(f"s_lshl_b32 s37, s31, 6\ns_lshl_b32 s38, s3, 4\ns_add_u32 s37, s37, s38\ns_lshl_b32 s37, s37, 12\ns_lshl_b32 s38, s30, 7\ns_add_u32 s37, s37, s38\ns_add_u32 s37, s37, {WS_AT}")
        A(f"s_lshl_b32 m0, s3, 11\ns_add_u32 s38, s37, {8*4096}")
        A("buffer_load_dwordx4 v6, s[24:27], s37 offen lds"); vm.issue("x")
        A("s_add_u32 m0, m0, 1024\ns_nop 0")
        A("buffer_load_dwordx4 v6, s[24:27], s38 offen lds"); vm.issue("x")
        A("v_bfe_u32 v6, v1, 2, 2\nv_lshl_add_u32 v6, v4, 4, v6\nv_lshlrev_b32 v6, 7, v6\nv_and_b32 v7, 3, v1\nv_lshl_add_u32 v6, v7, 3, v6\ns_lshl_b32 s37, s3, 5\nv_add_u32 v6, s37, v6")
    for ks in range(7):
        vm.wait(f"k{ks}")
        for tb in range(4):
            for j in range(4):
                c = "0" if ks == 0 else a((tb*4+j)*4,4)
                A(f"v_mfma_f32_16x16x32_bf16 {a((tb*4+j)*4,4)}, {v(FR+ks*32+16+j*4,4)}, {v(FR+ks*32+tb*4,4)}, {c}")
    if STAMPS: stamp(A, kidx, 2, 10, 44, 12)
    A(f"s_lshl_b32 s37, s3, 14\ns_add_u32 s37, s37, {RED}\nv_add_u32 v7, s37, v9\ns_nop 7\ns_nop 7")
    for tb in range(4):
        for j in range(4):
            A(f"ds_write_b128 v7, {a((tb*4+j)*4,4)} offset:{(tb*4+j)*1024}")
    vm.waitall()
    A("s_waitcnt lgkmcnt(0)\ns_barrier")
    A(f"s_lshl_b32 s37, s3, 12\ns_add_u32 s37, s37, {RED}\nv_add_u32 v7, s37, v9")
    P = 24
    for sw in range(4):
        for j in range(4):
            A(f"ds_read_b128 {v(P+(sw*4+j)*4,4)}, v7 offset:{sw*16384+j*1024}")
    AT = 96
    if SSM:
        for j in range(4): A(f"ds_read_b64_tr_b16 {v(AT+2*j,2)}, v6 offset:{j*512}")
    XF = 112
    for i in range(8): A(f"v_lshlrev_b32 {v(XF+2*i)}, 16, {v(16+i)}\nv_and_b32 {v(XF+2*i+1)}, 0xffff0000, {v(16+i)}")
    A("s_waitcnt lgkmcnt(0)")
    if SSM:
        for i in range(8):
            A(f"v_lshlrev_b32 {v(128+2*i)}, 16, {v(AT+i)}\nv_and_b32 {v(128+2*i+1)}, 0xffff0000, {v(AT+i)}")
            A(f"v_pk_add_f32 {v(XF+2*i,2)}, {v(XF+2*i,2)}, {v(128+2*i,2)}")
            A(f"v_cvt_pk_bf16_f32 {v(16+i)}, {v(XF+2*i)}, {v(XF+2*i+1)}")
            A(f"v_lshlrev_b32 {v(XF+2*i)}, 16, {v(16+i)}\nv_and_b32 {v(XF+2*i+1)}, 0xffff0000, {v(16+i)}")
    for i in range(8):
        A(f"v_pk_add_f32 {v(P+2*i,2)}, {v(P+2*i,2)}, {v(P+16+2*i,2)}\nv_pk_add_f32 {v(P+32+2*i,2)}, {v(P+32+2*i,2)}, {v(P+48+2*i,2)}")
    for i in range(8):
        A(f"v_pk_add_f32 {v(P+2*i,2)}, {v(P+2*i,2)}, {v(P+32+2*i,2)}")
        A(f"v_cvt_pk_bf16_f32 {v(16+i)}, {v(P+2*i)}, {v(P+2*i+1)}")
        A(f"v_lshlrev_b32 {v(P+2*i)}, 16, {v(16+i)}\nv_and_b32 {v(P+2*i+1)}, 0xffff0000, {v(16+i)}")
        A(f"v_pk_add_f32 {v(P+2*i,2)}, {v(P+2*i,2)}, {v(XF+2*i,2)}")
        A(f"v_cvt_pk_bf16_f32 {v(16+i)}, {v(P+2*i)}, {v(P+2*i+1)}")
    A("buffer_store_dwordx4 v[16:19], v5, s[20:23], s36 offen")
    A("buffer_store_dwordx4 v[20:23], v5, s[20:23], s36 offen offset:16")
    if STAMPS:
        A("s_waitcnt vmcnt(0)"); stamp(A, kidx, 1, 10, 44, 12)
    A.label(f"{name}_end")
    A.end_kernel(name, 248+64, sgpr=96, accum=248)
    A.launch(name, NG, 256, RED+65536)
```

```python
from gen import *
import math
LOG2E = math.log2(math.e)
def bf16r(A, dst, src):
    A(f"v_cvt_pk_bf16_f32 {v(dst)}, {v(src)}, {v(src)}\nv_lshlrev_b32 {v(dst)}, 16, {v(dst)}")
def cmul(D, X, Y, T):
    return [f"v_pk_mul_f32 {v(T,2)}, {v(X,2)}, {v(Y,2)} op_sel:[0,0] op_sel_hi:[0,1]",
            f"v_pk_fma_f32 {v(D,2)}, {v(X,2)}, {v(Y,2)}, {v(T,2)} op_sel:[1,1,0] op_sel_hi:[1,0,1] neg_lo:[1,0,0]"]
RSZ = 19712; PART = 16512; PITCH = 272
def interleave(*lists):
    out = []; n = max(len(l) for l in lists)
    for i in range(n):
        for l in lists:
            if i < len(l): out += l[i]
    return out
def gen_ssm(A, name, kidx, STAMPS, NG):
    A("s_load_dwordx8 s[12:19], s[0:1], 8\ns_load_dwordx4 s[20:23], s[0:1], 40")
    A(f"s_sub_u32 s28, s2, {NG}\ns_lshl_b32 s28, s28, 1\ns_lshr_b32 s29, s3, 1\ns_add_u32 s28, s28, s29\ns_and_b32 s29, s3, 1")
    A(f"s_mul_i32 s30, s3, {RSZ}")
    A(f"s_xor_b32 s31, s3, 1\ns_mul_i32 s31, s31, {RSZ}")
    A("v_and_b32 v3, 15, v1\nv_lshrrev_b32 v4, 4, v1")
    A("s_lshl_b32 s32, s28, 9\ns_lshl_b32 s33, s29, 8\ns_add_u32 s32, s32, s33\nv_lshlrev_b32 v5, 1, v1\nv_add_u32 v5, s32, v5")
    A("s_lshl_b32 s33, s28, 1\nv_mov_b32 v6, s33")
    A("s_waitcnt lgkmcnt(0)")
    if STAMPS: stamp(A, kidx, 0, 10, 44, 240)
    vm = Trk(A, "vmcnt", 63); lg = Trk(A, "lgkmcnt", 15)
    PR = 8
    A("global_load_ushort v16, v6, s[20:21]"); vm.issue("p")
    for p in range(2):
        for k in range(4):
            A(f"global_load_ushort {v(PR+4*p+k)}, v5, s[{12+2*k}:{13+2*k}] offset:{128*p}"); vm.issue("p")
    A("global_load_ushort v17, v6, s[22:23]"); vm.issue("p")
    A(f"s_lshl_b32 s33, s28, 12\ns_add_u32 s24, s10, s33\ns_addc_u32 s25, s11, 0\ns_mov_b32 s26, 4096\ns_mov_b32 s27, 0x20000")
    UR = 200
    XE = 228; U0 = 184
    A(f"v_lshlrev_b32 v7, 6, v1\nv_subrev_u32 v7, {512+32}, v7")
    for c in range(7):
        A(f"v_add_u32 v{18+c}, {16*c}, v7")
    for c in range(7):
        A(f"buffer_load_dwordx4 {v(UR+4*c,4)}, v{18+c}, s[24:27], 0 offen"); vm.issue("u")
    A("v_lshlrev_b32 v18, 6, v1")
    for c in range(4):
        A(f"buffer_load_dwordx4 {v(U0+4*c,4)}, v18, s[24:27], 0 offen offset:{16*c}"); vm.issue("u")
    A("v_lshlrev_b32 v236, 5, v3\nv_lshl_add_u32 v236, v4, 3, v236\ns_lshl_b32 s33, s29, 11\nv_add_u32 v236, s33, v236")
    for t in range(4):
        A(f"buffer_load_dwordx2 {v(XE+2*t,2)}, v236, s[24:27], 0 offen offset:{512*t}"); vm.issue("u")
    A("v_lshl_add_u32 v18, v1, 2, s30")
    A(f"v_mul_u32_u24 v19, {PITCH}, v3\nv_lshl_add_u32 v19, v4, 4, v19\nv_add_u32 v19, s30, v19")
    vm.wait("p")
    for r in list(range(8, 18)): A(f"v_lshlrev_b32 v{r}, 16, v{r}")
    A(f"v_mul_f32 v16, {f32(LOG2E)}, v16\nv_exp_f32 v16, v16")
    for p in range(2): A(f"v_mul_f32 {v(PR+4*p)}, {f32(LOG2E)}, {v(PR+4*p)}\nv_exp_f32 {v(PR+4*p)}, {v(PR+4*p)}")
    A("v_max3_f32 v20, |v10|, |v11|, |v14|\nv_max_f32 v20, v20, |v15|" .replace("v_max_f32 v20, v20, |v15|", "v_max_f32_e64 v20, v20, |v15|"))
    bf16r(A, 16, 16)
    for p in range(2): bf16r(A, PR+4*p, PR+4*p)
    for sh in (1, 2, 4, 8):
        A(f"s_nop 1\nv_max_f32_dpp v20, v20, v20 row_ror:{sh} row_mask:0xf bank_mask:0xf")
    A("s_nop 1\nv_readlane_b32 s34, v20, 0\nv_readlane_b32 s35, v20, 16\nv_readlane_b32 s36, v20, 32\nv_readlane_b32 s37, v20, 48")
    A(f"s_max_u32 s34, s34, s35\ns_max_u32 s36, s36, s37\ns_max_u32 s34, s34, s36\ns_max_u32 s34, s34, {f32(1e-30)}")
    A("v_rcp_f32 v21, s34")
    for p in range(2):
        A(f"v_mul_f32 {v(PR+4*p)}, {v(PR+4*p)}, v16\nv_mul_f32 {v(PR+4*p+1)}, {v(PR+4*p+1)}, v16")
        A(f"v_mul_f32 {v(PR+4*p)}, {f32(-LOG2E)}, {v(PR+4*p)}\nv_mul_f32 {v(PR+4*p+1)}, {f32(1/(2*math.pi))}, {v(PR+4*p+1)}")
        A(f"v_mul_f32 {v(PR+4*p+2)}, {v(PR+4*p+2)}, v21\nv_mul_f32 {v(PR+4*p+3)}, {v(PR+4*p+3)}, v21")
    KD = 24
    E1, E8, E128 = 36, 38, 40
    G = 48
    LO = 64; T0, T1, T2 = 66, 68, 70
    CV = 72
    FR = 96
    cvn = [0]
    def put(row, X, neg):
        c = CV + cvn[0] % 8; cvn[0] += 1
        return [f"v_cvt_pk_f16_f32 {v(c)}, {v(X)}, {'-' if neg else ''}{v(X+1)}", f"ds_write_b32 v18, {v(c)} offset:{row*PITCH}"]
    for p in range(2):
        z = PR+4*p
        for E, m in ((E1, 1.0), (E8, 8.0), (E128, 128.0)):
            A(f"v_mul_f32 v42, {f32(m)}, {v(z)}\nv_mul_f32 v43, {f32(m)}, {v(z+1)}\nv_exp_f32 v42, v42\nv_fract_f32 v43, v43\nv_cos_f32 {v(E)}, v43\nv_sin_f32 {v(E+1)}, v43\ns_nop 0")
            A(f"v_mul_f32 {v(E)}, {v(E)}, v42\nv_mul_f32 {v(E+1)}, {v(E+1)}, v42")
        if p == 1: lg.waitall()
        lo = [[f"v_mov_b32 {v(CV+cvn[0]%8)}, 0x3c00", f"ds_write_b32 v18, {v(CV+cvn[0]%8)} offset:{41*PITCH}"]]; cvn[0] += 1
        hi = []
        steps_lo = [("L", 42, E8, None)] + [("L", 41+l, LO, (LO, E8 if l == 2 else LO, E8)) for l in range(2, 16)]
        steps_hi = [("H", 0, z+2, None)]
        for b in range(1, 8): steps_hi.append(("H", b, G+2*b, (G+2*b, (z+2) if b == 1 else G+2*(b-1), E1)))
        for b in range(8): steps_hi.append(("H", 8+b, G+2*b, (G+2*b, (z+2) if b == 0 else G+2*b, E128)))
        for a_ in range(2):
            for b in range(4): steps_hi.append(("H", 16+4*a_+b, G+4*b, (G+4*b, G+4*b, E128)))
        for a_ in range(4):
            for b in range(2): steps_hi.append(("H", 24+2*a_+b, G+8*b, (G+8*b, G+8*b, E128)))
        for a_ in range(9): steps_hi.append(("H", 32+a_, G, (G, G, E128)))
        seq = []; il = 0
        for i, sh_ in enumerate(steps_hi):
            seq.append(sh_)
            if (i < 7 and i % 2 == 0) or i >= 24:
                if il < len(steps_lo): seq.append(steps_lo[il]); il += 1
        while il < len(steps_lo): seq.append(steps_lo[il]); il += 1
        for l in lo[0]: A(l)
        pend = []
        for kind, row, X, mul in seq:
            if mul:
                m = cmul(mul[0], mul[1], mul[2], T0 if kind == "H" else T1)
                A(m[0])
                for l in pend: A(l)
                pend = []
                A(m[1])
            else:
                for l in pend: A(l)
            pend = put(row, X, kind == "L")
        for l in pend: A(l)
        A("s_waitcnt lgkmcnt(0)")
        for j in range(4):
            A(f"ds_read_b128 {v(FR+j*16+12,4)}, v19 offset:{41*PITCH+j*64}"); lg.issue(f"k{j}")
            for blk in range(3):
                A(f"ds_read_b128 {v(FR+j*16+4*blk,4)}, v19 offset:{blk*16*PITCH+j*64}"); lg.issue(f"k{j}")
        for j in range(4):
            lg.wait(f"k{j}")
            for blk in range(3):
                c = "0" if (p == 0 and j == 0) else v(KD+4*blk,4)
                A(f"v_mfma_f32_16x16x32_f16 {v(KD+4*blk,4)}, {v(FR+j*16+4*blk,4)}, {v(FR+j*16+12,4)}, {c}")
    if STAMPS: stamp(A, kidx, 2, 10, 44, 240)
    A(f"v_lshl_add_u32 v20, v1, 4, s30\nv_lshl_add_u32 v21, v1, 4, s31\nv_mov_b32 v22, s34\ns_nop 7")
    for i in range(12): A(f"v_mul_f32 {v(KD+i)}, s34, {v(KD+i)}")
    for blk in range(3): A(f"ds_write_b128 v20, {v(KD+4*blk,4)} offset:{PART+blk*1024}")
    A(f"v_mov_b32 v23, s30\nds_write_b32 v23, v22 offset:{PART+3072}")
    UF = 96; PF = 40
    vm.wait("u")
    for i in range(28): A(f"v_lshlrev_b32 {v(UF+2*i)}, 16, {v(UR+i)}\nv_and_b32 {v(UF+2*i+1)}, 0xffff0000, {v(UR+i)}")
    P = lambda k: v(PF+k-4)
    A(f"v_mov_b32 {P(4)}, 0")
    for k in range(5, 52): A(f"v_add_f32 {P(k)}, {P(k-1)}, {v(UF+k)}")
    A("s_waitcnt lgkmcnt(0)\ns_barrier")
    for blk in range(3): A(f"ds_read_b128 {v(152+4*blk,4)}, v21 offset:{PART+blk*1024}")
    A(f"v_mov_b32 v23, s31\nds_read_b32 v22, v23 offset:{PART+3072}")
    A("v_mov_b32 v164, 0\nv_mov_b32 v165, 0\nv_mov_b32 v166, 0\nv_mov_b32 v167, 0")
    A(f"s_cmp_eq_u32 s29, 0\ns_cbranch_scc0 {name}_w1")
    def kfin():
        A("s_waitcnt lgkmcnt(0)" )
        A("v_max_f32 v22, s34, v22\nv_rcp_f32 v23, v22")
        for i in range(12): A(f"v_add_f32 {v(KD+i)}, {v(KD+i)}, {v(152+i)}")
        for i in range(12): A(f"v_mul_f32 {v(KD+i)}, {v(KD+i)}, v23")
        A("v_mul_f32 v22, v22, v16\nv_add_f32 v22, v22, v22")
        A(f"s_nop 0\nv_readlane_b32 s36, {v(KD+4)}, 0\nv_readlane_b32 s37, {v(KD+4)}, 32\nv_readlane_b32 s38, {v(KD+8)}, 0\nv_mov_b32 v23, 0")
    def S(dst, k, r): return f"v_sub_f32 {v(dst)}, {P(k+r)}, {P(k-r-1)}"
    def mf_loop(jobs, base, RING, nr):
        lg.q = []
        D = nr-1
        for i in range(min(D, len(jobs))):
            A(f"ds_read_b128 {v(RING+4*(i%nr),4)}, {v(jobs[i][0])} offset:{jobs[i][1]}"); lg.issue(f"j{i}")
        for i, (ar, off, fn) in enumerate(jobs):
            if i+D < len(jobs):
                A(f"ds_read_b128 {v(RING+4*((i+D)%nr),4)}, {v(jobs[i+D][0])} offset:{jobs[i+D][1]}"); lg.issue(f"j{i+D}")
            lg.wait(f"j{i}")
            A(fn(RING+4*(i%nr)))
    def tfrags(dst, areg, off0, n, step):
        for d in range(n):
            o = (off0 - step*d)//4
            A(f"ds_read2_b32 {v(dst+4*d,2)}, {v(areg)} offset0:{o} offset1:{o+1}\nds_read2_b32 {v(dst+4*d+2,2)}, {v(areg)} offset0:{o+2} offset1:{o+3}")
    def epilogue(Y):
        A(f"s_lshl_b32 s33, s28, 12\ns_add_u32 s33, s33, {WS_AT}\ns_add_u32 s24, s10, s33\ns_addc_u32 s25, s11, 0")
        for i in range(16): A(f"v_mul_f32 {v(Y+i)}, {v(Y+i)}, v22")
        for i in range(8):
            t = 184+2*i
            A(f"v_lshlrev_b32 {v(t)}, 16, {v(XE+i)}\nv_and_b32 {v(t+1)}, 0xffff0000, {v(XE+i)}")
            A(f"v_mul_f32 {v(t)}, {v(t)}, v17\nv_mul_f32 {v(t+1)}, {v(t+1)}, v17")
            A(f"v_cvt_pk_bf16_f32 {v(XE+i)}, {v(t)}, {v(t+1)}\nv_cvt_pk_bf16_f32 v23, {v(Y+2*i)}, {v(Y+2*i+1)}")
            A(f"v_lshlrev_b32 {v(t)}, 16, {v(XE+i)}\nv_and_b32 {v(t+1)}, 0xffff0000, {v(XE+i)}")
            A(f"v_lshlrev_b32 {v(Y+2*i)}, 16, v23\nv_and_b32 {v(Y+2*i+1)}, 0xffff0000, v23")
            A(f"v_pk_add_f32 {v(t,2)}, {v(t,2)}, {v(Y+2*i,2)}\nv_cvt_pk_bf16_f32 {v(XE+i)}, {v(t)}, {v(t+1)}")
        for t in range(4):
            A(f"buffer_store_dwordx2 {v(XE+2*t,2)}, v236, s[24:27], 0 offen offset:{512*t}")
        if STAMPS:
            A("s_waitcnt vmcnt(0)"); stamp(A, kidx, 1, 10, 44, 240)
        A("s_endpgm")
    U16 = 0; W16 = 4608; KA = W16+5376; K16 = KA+1280; YB0 = 0
    A(f"ds_write_b128 v20, v[164:167] offset:{KA}\nds_write_b128 v20, v[164:167] offset:{KA+1024}")
    A(f"v_lshl_add_u32 v19, v1, 3, s30\nds_write_b64 v19, v[164:165] offset:{U16}")
    for i in range(16):
        A(f"v_lshlrev_b32 v168, 16, {v(U0+i)}\nv_and_b32 v169, 0xffff0000, {v(U0+i)}\nv_cvt_pk_f16_f32 {v(U0+i)}, v168, v169")
    A("v_lshl_add_u32 v18, v1, 6, s30")
    for c in range(4): A(f"ds_write_b128 v18, {v(U0+4*c,4)} offset:{U16+512+16*c}")
    A("v_cmp_gt_u32 vcc, 40, v1\ns_and_saveexec_b64 s[40:41], vcc")
    for phi in range(16):
        o = 168 + (phi % 2)*6
        for lam in range(2):
            k = 16+16*lam+phi
            A(S(o+2+2*lam, k-8, 3)); A(S(o+3+2*lam, k, 4))
        for lam in range(2): A(f"v_cvt_pk_f16_f32 {v(o+lam)}, {v(o+2+2*lam)}, {v(o+3+2*lam)}")
        A(f"ds_write_b64 v19, {v(o,2)} offset:{W16+phi*336}")
    A("s_mov_b64 exec, s[40:41]")
    kfin()
    A(f"v_writelane_b32 v23, s36, 63\nv_sub_f32 {v(KD+3)}, {v(KD+3)}, v23")
    for i in (0, 2, 8, 10): A(f"v_cvt_pk_f16_f32 {v(KD+i)}, {v(KD+i)}, {v(KD+i+1)}")
    A("v_lshrrev_b32 v18, 1, v4\nv_lshlrev_b32 v18, 7, v18\nv_lshl_add_u32 v18, v3, 3, v18\nv_and_b32 v19, 1, v4\nv_lshl_add_u32 v18, v19, 2, v18")
    A(f"v_sub_u32 v18, 285, v18\nv_lshl_add_u32 v18, v18, 1, s30")
    for cp in range(2):
        for i in range(4):
            A(f"ds_write_b16{'_d16_hi' if i%2 else ''} v18, {v(KD+(i//2)*2)} offset:{KA+cp*642+(3-i)*2}")
    A(f"v_lshl_add_u32 v19, v4, 6, v3\nv_sub_u32 v19, {111+128}, v19\nv_lshl_add_u32 v19, v19, 1, s30")
    A("v_cmp_gt_u32 vcc, 33, v1\ns_and_saveexec_b64 s[40:41], vcc")
    A(f"ds_write_b16 v19, {v(KD+8)} offset:{K16-256+96}")
    A("v_cmp_gt_u32 vcc, 32, v1\ns_and_b64 exec, exec, vcc")
    for i in range(1, 4):
        A(f"ds_write_b16{'_d16_hi' if i%2 else ''} v19, {v(KD+8+(i//2)*2)} offset:{K16-256+(3-i)*32}")
    A("s_mov_b64 exec, s[40:41]")
    TD = 40; T16 = 76; TT = 96; ACC = 100; RING = 132
    A("v_and_b32 v18, 1, v3\nv_mul_u32_u24 v18, 642, v18\nv_lshlrev_b32 v19, 3, v4\nv_sub_u32 v19, v19, v3\nv_lshl_add_u32 v18, v19, 1, v18")
    A(f"v_add_u32 v18, {KA+32}, v18\nv_add_u32 v18, s30, v18")
    tfrags(TD, 18, 512, 9, 64)
    A(f"v_lshlrev_b32 v19, 2, v4\nv_sub_u32 v19, v19, v3\nv_lshlrev_b32 v19, 2, v19\nv_add_u32 v19, {K16+60}, v19\nv_add_u32 v19, s30, v19")
    tfrags(T16, 19, 256, 5, 64)
    A("v_mov_b32 v18, s38\nv_cvt_pk_f16_f32 v18, v18, v18\nv_lshlrev_b32 v19, 3, v4\nv_sub_u32 v19, v3, v19\nv_add_u32 v19, 5, v19\nv_and_b32 v20, 0xffff, v18\nv_and_b32 v21, 0xffff0000, v18")
    for p in range(8): A(f"v_cmp_eq_u32 {s(48+2*p,2)}, {p}, v19")
    for p in range(4): A(f"v_cndmask_b32 {v(TT+p)}, 0, v20, {s(48+4*p,2)}")
    for p in range(4): A(f"v_cndmask_b32 {v(TT+p)}, {v(TT+p)}, v21, {s(50+4*p,2)}")
    for i in range(32): A(f"v_mov_b32 {v(ACC+i)}, 0")
    A(f"v_lshlrev_b32 v18, 5, v3\nv_lshl_add_u32 v18, v4, 4, v18\nv_add_u32 v18, s30, v18")
    A(f"v_mul_u32_u24 v19, 336, v3\nv_lshl_add_u32 v19, v4, 4, v19\nv_add_u32 v19, s30, v19")
    A("s_waitcnt lgkmcnt(0)")
    jobs = []
    order = [4, 5, 6, 7, 0, 1, 2, 3]
    for nb in order:
        ac = v(ACC+4*nb, 4)
        for d in range(9):
            dp = 1+2*d
            if nb == 0 and dp > 15: continue
            jobs.append((18, U16+512+512*nb-32*dp, lambda f, ac=ac, d=d: f"v_mfma_f32_16x16x32_f16 {ac}, {v(TD+4*d,4)}, {v(f,4)}, {ac}"))
        if nb >= 3:
            jobs.append((18, U16+512+512*nb-2048, lambda f, ac=ac: f"v_mfma_f32_16x16x32_f16 {ac}, {v(TT,4)}, {v(f,4)}, {ac}"))
            for d in range(5):
                if nb-3-d >= 0:
                    jobs.append((19, W16+64*(nb-3-d), lambda f, ac=ac, d=d: f"v_mfma_f32_16x16x32_f16 {ac}, {v(f,4)}, {v(T16+4*d,4)}, {ac}"))
    mf_loop(jobs, 0, RING, 8)
    if STAMPS: stamp(A, kidx, 3, 10, 44, 240)
    YB0 = 12288
    A(f"v_lshlrev_b32 v20, 6, v3\nv_lshl_add_u32 v20, v4, 4, v20\nv_add_u32 v21, s31, v20\nv_add_u32 v20, s30, v20")
    for t in range(4): A(f"ds_write_b128 v20, {v(ACC+16+4*t,4)} offset:{YB0+1024*t}")
    A("s_waitcnt lgkmcnt(0)\ns_barrier")
    for t in range(4): A(f"ds_read_b128 {v(RING+4*t,4)}, v21 offset:{1024*t}")
    A("s_waitcnt lgkmcnt(0)")
    for i in range(8): A(f"v_pk_add_f32 {v(ACC+2*i,2)}, {v(ACC+2*i,2)}, {v(RING+2*i,2)}")
    epilogue(ACC)
    A.label(f"{name}_w1")
    W4 = 0; W8 = 8256; K4 = W8+7296; K8 = K4+384
    A(f"v_cmp_gt_u32 vcc, 48, v1\ns_and_saveexec_b64 s[40:41], vcc\nds_write_b128 v20, v[164:167] offset:{K4}\ns_mov_b64 exec, s[40:41]")
    S3 = 164
    for k in range(12, 48): A(S(S3+k-12, k, 1))
    A("v_lshl_add_u32 v18, v1, 5, s30")
    for phi in range(4):
        o = 200 + (phi % 2)*8
        for lam in range(8):
            k = 16+4*lam+phi
            A(f"v_cvt_pk_f16_f32 {v(o+lam)}, {v(UF+k-2)}, {v(S3+k-12)}")
        A(f"ds_write_b128 v18, {v(o,4)} offset:{W4+phi*2064}\nds_write_b128 v18, {v(o+4,4)} offset:{W4+phi*2064+16}")
    A("v_cmp_gt_u32 vcc, 56, v1\ns_and_saveexec_b64 s[40:41], vcc")
    for phi in range(8):
        o = 200 + (phi % 2)*8
        for lam in range(4):
            k = 16+8*lam+phi
            A(S(o+4+lam, k, 2))
        for lam in range(4):
            k = 16+8*lam+phi
            A(f"v_cvt_pk_f16_f32 {v(o+lam)}, {v(S3+k-4-12)}, {v(o+4+lam)}")
        A(f"ds_write_b128 v20, {v(o,4)} offset:{W8+phi*912}")
    A("s_mov_b64 exec, s[40:41]")
    kfin()
    A(f"v_writelane_b32 v23, s37, 31\nv_writelane_b32 v23, s38, 63\nv_sub_f32 {v(KD+7)}, {v(KD+7)}, v23")
    for i in (4, 6): A(f"v_cvt_pk_f16_f32 {v(KD+i)}, {v(KD+i)}, {v(KD+i+1)}")
    A("v_and_b32 v19, 1, v4\nv_lshlrev_b32 v19, 6, v19\nv_lshl_add_u32 v18, v3, 2, v19\nv_sub_u32 v18, 156, v18\nv_lshl_add_u32 v18, v18, 1, s30")
    A("v_lshl_add_u32 v19, v3, 1, v19\nv_sub_u32 v19, 126, v19\nv_lshl_add_u32 v19, v19, 1, s30")
    A("s_mov_b64 s[40:41], exec\ns_mov_b32 exec_hi, 0")
    for i in range(4): A(f"ds_write_b16{'_d16_hi' if i%2 else ''} v18, {v(KD+4+(i//2)*2)} offset:{K4+(3-i)*2}")
    A("s_mov_b32 exec_hi, -1\ns_mov_b32 exec_lo, 0")
    for i in range(4): A(f"ds_write_b16{'_d16_hi' if i%2 else ''} v19, {v(KD+4+(i//2)*2)} offset:{K8+66-64*(i//2)-2*(i%2)}")
    A("s_mov_b64 exec, s[40:41]")
    T4 = 40; T8 = 60; ACC = 100; RING = 132
    A(f"v_lshlrev_b32 v19, 2, v4\nv_sub_u32 v19, v19, v3\nv_lshlrev_b32 v19, 2, v19\nv_add_u32 v19, {K4+60}, v19\nv_add_u32 v19, s30, v19")
    tfrags(T4, 19, 256, 5, 64); tfrags(T8, 19, 256+384, 5, 64)
    for i in range(32): A(f"v_mov_b32 {v(ACC+i)}, 0")
    A("v_and_b32 v18, 3, v3\nv_mul_u32_u24 v18, 2064, v18\nv_lshrrev_b32 v19, 2, v3\nv_lshl_add_u32 v18, v19, 6, v18\nv_lshl_add_u32 v18, v4, 4, v18\nv_add_u32 v18, s30, v18")
    A("v_and_b32 v19, 7, v3\nv_mul_u32_u24 v19, 912, v19\nv_lshrrev_b32 v21, 3, v3\nv_lshl_add_u32 v19, v21, 6, v19\nv_lshl_add_u32 v19, v4, 4, v19\nv_add_u32 v19, s30, v19")
    A("s_waitcnt lgkmcnt(0)")
    jobs = []
    for t in range(8):
        ac = v(ACC+4*t, 4)
        for d in range(5):
            if 4*t-d >= 0:
                jobs.append((18, W4+64*(4*t-d), lambda f, ac=ac, d=d: f"v_mfma_f32_16x16x32_f16 {ac}, {v(f,4)}, {v(T4+4*d,4)}, {ac}"))
    mf_loop(jobs, 0, RING, 8)
    A("s_nop 7\ns_nop 7")
    for t in range(8): A(f"ds_write_b128 v20, {v(ACC+4*t,4)} offset:{1024*t}")
    A("v_lshrrev_b32 v21, 1, v4\nv_lshlrev_b32 v21, 9, v21\nv_lshl_add_u32 v21, v3, 5, v21\nv_and_b32 v23, 1, v4\nv_lshl_add_u32 v21, v23, 4, v21\nv_add_u32 v21, s30, v21")
    for t in range(1, 8): A(f"ds_read_b128 {v(ACC+4*t,4)}, v21 offset:{1024*t}")
    A("s_waitcnt lgkmcnt(0)")
    jobs = []
    for t in range(1, 8):
        ac = v(ACC+4*t, 4)
        for d in range(5):
            if 2*t-2-d >= 0:
                jobs.append((19, W8+64*(2*t-2-d), lambda f, ac=ac, d=d: f"v_mfma_f32_16x16x32_f16 {ac}, {v(f,4)}, {v(T8+4*d,4)}, {ac}"))
    mf_loop(jobs, 0, RING, 8)
    if STAMPS: stamp(A, kidx, 4, 10, 44, 240)
    A("s_nop 7\ns_nop 7")
    for t in range(1, 8): A(f"ds_write_b128 v21, {v(ACC+4*t,4)} offset:{1024*t}")
    A(f"v_lshlrev_b32 v20, 6, v3\nv_lshl_add_u32 v20, v4, 4, v20\nv_add_u32 v21, s31, v20\nv_add_u32 v20, s30, v20")
    A("s_waitcnt lgkmcnt(0)\ns_barrier")
    for t in range(4):
        A(f"ds_read_b128 {v(ACC+4*t,4)}, v20 offset:{4096+1024*t}\nds_read_b128 {v(RING+4*t,4)}, v21 offset:{YB0+1024*t}")
    A("s_waitcnt lgkmcnt(0)")
    for i in range(8): A(f"v_pk_add_f32 {v(ACC+2*i,2)}, {v(ACC+2*i,2)}, {v(RING+2*i,2)}")
    epilogue(ACC)
    return 4*RSZ
```

```python
import sys, os
from gen import *
import k1
A = Asm()
ST = bool(int(os.environ.get("STAMPS", "0")))
parts = os.environ.get("PARTS", "1").split(",")
if "1" in parts: k1.gen_k1(A, "g1_kernel", 0, ST)
if "2" in parts:
    import k2; k2.gen_k2(A, "g2_kernel", 1, ST)
if "3" in parts:
    import k3; k3.gen_k3(A, "g3_kernel", 2, ST)
if "F" in parts:
    import kf; kf.gen_kf(A, "gf_kernel", 0, ST)
for i in range(int(os.environ.get("DUMMY","0"))):
    A.begin_kernel(f"d{i}_kernel"); A.end_kernel(f"d{i}_kernel", 8); A.launch(f"d{i}_kernel", 8, 64, 0)
hdr = "".join(l for l in open("parallel_sum__ssm_conv_s4d__mixer_gmlp__prompt.s.ref") if l.startswith(";") and "@launch" not in l and "Override" not in l and "grid=ceil" not in l)
open(sys.argv[1], "w").write(A.text(hdr))
```

```python
from gen import *
import math, os
PF = int(os.environ.get('PF','1'))
LOG2E = math.log2(math.e)
GC0 = -2*0.7978845608028654*LOG2E
GC1 = GC0*0.044715
def bf16r(A, dst, src):
    A(f"v_cvt_pk_bf16_f32 {v(dst)}, {v(src)}, {v(src)}\nv_lshlrev_b32 {v(dst)}, 16, {v(dst)}")

def gelu_block(A, regs, tmp, vC1, out_packed):
    n = len(regs)
    for i in range(0, n, 2):
        A(f"v_cvt_pk_bf16_f32 {v(out_packed[i//2])}, {v(regs[i])}, {v(regs[i+1])}")
    for i in range(0, n, 2):
        A(f"v_lshlrev_b32 {v(regs[i])}, 16, {v(out_packed[i//2])}")
        A(f"v_and_b32 {v(regs[i+1])}, 0xffff0000, {v(out_packed[i//2])}")
    for i in range(n): A(f"v_mul_f32 {v(tmp[i])}, {v(regs[i])}, {v(regs[i])}")
    for i in range(n): A(f"v_fmaak_f32 {v(tmp[i])}, {v(tmp[i])}, {v(vC1)}, {f32(GC0)}")
    for i in range(n): A(f"v_mul_f32 {v(tmp[i])}, {v(tmp[i])}, {v(regs[i])}")
    for i in range(n): A(f"v_exp_f32 {v(tmp[i])}, {v(tmp[i])}")
    for i in range(n): A(f"v_add_f32 {v(tmp[i])}, 1.0, {v(tmp[i])}")
    for i in range(n): A(f"v_rcp_f32 {v(tmp[i])}, {v(tmp[i])}")
    for i in range(n): A(f"v_mul_f32 {v(regs[i])}, {v(regs[i])}, {v(tmp[i])}")
    for i in range(0, n, 2):
        A(f"v_cvt_pk_bf16_f32 {v(out_packed[i//2])}, {v(regs[i])}, {v(regs[i+1])}")

def gen_k1(A, name, kidx, STAMPS=False):
    NG = 224; NPREP = 32
    XN = 65536
    ST = XN + 57344
    ST2 = ST + 2048
    LDS = ST2 + 512
    A.begin_kernel(name)
    A(f"s_cmp_ge_u32 s2, {NG+NPREP}\ns_cbranch_scc1 {name}_end")
    A("s_load_dwordx2 s[4:5], s[0:1], 0")
    A("s_load_dwordx2 s[6:7], s[0:1], 64")
    A("s_load_dwordx4 s[8:11], s[0:1], 104")
    A("s_load_dwordx2 s[12:13], s[0:1], 88")
    A("s_load_dwordx2 s[14:15], s[0:1], 72")
    A("v_and_b32 v1, 63, v0\nv_lshrrev_b32 v2, 6, v0")
    A("s_nop 0\nv_readfirstlane_b32 s3, v2")
    A("s_waitcnt lgkmcnt(0)")
    if STAMPS: stamp(A, kidx, 0, 10, 44, 148)
    A(f"s_cmp_ge_u32 s2, {NG}\ns_cbranch_scc1 {name}_prep")
    srd(A, 16, 4, 2048*896)
    srd(A, 20, 6, 448*3584)
    srd(A, 24, 10, WS_END)
    A(f"s_lshr_b32 s28, s2, 3\ns_mul_i32 s29, s28, 37\ns_lshr_b32 s29, s29, 8")
    A("s_mul_i32 s30, s29, 7\ns_sub_u32 s31, s28, s30")
    A("s_and_b32 s30, s2, 7\ns_lshl_b32 s30, s30, 2\ns_add_u32 s30, s30, s29")
    vm = Trk(A, "vmcnt", 63); lg = Trk(A, "lgkmcnt", 15)
    A("v_lshrrev_b32 v3, 3, v0\nv_and_b32 v4, 7, v0")
    A(f"s_mul_i32 s32, s30, {64*896}")
    A(f"v_mul_u32_u24 v5, 896, v3\nv_lshl_add_u32 v5, v4, 4, v5")
    XR = 64
    for i in range(7):
        A(f"buffer_load_dwordx4 {v(XR+4*i,4)}, v5, s[16:19], s32 offen offset:{i*128}"); vm.issue("x")
    A("v_lshrrev_b32 v6, 5, v1\nv_and_b32 v7, 31, v1")
    A("v_lshl_add_u32 v8, v2, 2, v6")
    for e in range(2):
        d = 10+e
        A(f"v_add_u32 v9, {2*e}, v8")
        A(f"v_and_b32 v12, 7, v9\nv_lshlrev_b32 v12, 1, v12\nv_xor_b32 v12, v12, v7")
        A(f"v_and_b32 v13, 15, v12\nv_lshlrev_b32 v13, 4, v13")
        A(f"v_lshrrev_b32 v12, 4, v12\nv_mul_u32_u24 v12, 1792, v12")
        A(f"v_mul_u32_u24 v{d}, 3584, v9\nv_add3_u32 v{d}, v{d}, v12, v13")
    A(f"s_lshl_b32 s33, s31, 8")
    A(f"s_lshl_b32 s34, s3, 11")
    def dma(st):
        A(f"s_add_u32 m0, s34, {(st%4)*16384}\ns_add_u32 s35, s33, {st*32*3584}")
        A(f"buffer_load_dwordx4 v10, s[20:23], s35 offen lds"); vm.issue(f"w{st}")
        A(f"s_add_u32 m0, m0, 1024\ns_nop 0")
        A(f"buffer_load_dwordx4 v11, s[20:23], s35 offen lds"); vm.issue(f"w{st}")
    for st in range(4): dma(st)
    XF = 96
    vm.wait("x")
    for i in range(28):
        A(f"v_lshlrev_b32 {v(XF+2*i)}, 16, {v(XR+i)}\nv_and_b32 {v(XF+2*i+1)}, 0xffff0000, {v(XR+i)}")
    for c in range(4): A(f"v_pk_add_f32 {v(16+2*c,2)}, {v(XF+2*c,2)}, {v(XF+8+2*c,2)}")
    for i in range(8, 28): A(f"v_pk_add_f32 {v(16+2*(i%4),2)}, {v(16+2*(i%4),2)}, {v(XF+2*i,2)}")
    A("v_pk_add_f32 v[16:17], v[16:17], v[18:19]\nv_pk_add_f32 v[20:21], v[20:21], v[22:23]\nv_pk_add_f32 v[16:17], v[16:17], v[20:21]\nv_add_f32 v16, v16, v17")
    def red8(r):
        A(f"s_nop 1\nv_add_f32_dpp {v(r)}, {v(r)}, {v(r)} quad_perm:[1,0,3,2] row_mask:0xf bank_mask:0xf")
        A(f"s_nop 1\nv_add_f32_dpp {v(r)}, {v(r)}, {v(r)} quad_perm:[2,3,0,1] row_mask:0xf bank_mask:0xf")
        A(f"s_nop 1\nv_add_f32_dpp {v(r)}, {v(r)}, {v(r)} row_half_mirror row_mask:0xf bank_mask:0xf")
    red8(16)
    A(f"v_mul_f32 v16, {f32(1/448)}, v16\nv_mov_b32 v17, v16")
    for i in range(28):
        t = 24+2*(i%4)
        A(f"v_pk_add_f32 {v(t,2)}, {v(XF+2*i,2)}, v[16:17] neg_lo:[0,1] neg_hi:[0,1]")
        if i < 4: A(f"v_pk_mul_f32 {v(32+2*i,2)}, {v(t,2)}, {v(t,2)}")
        else: A(f"v_pk_fma_f32 {v(32+2*(i%4),2)}, {v(t,2)}, {v(t,2)}, {v(32+2*(i%4),2)}")
    A("v_pk_add_f32 v[32:33], v[32:33], v[34:35]\nv_pk_add_f32 v[36:37], v[36:37], v[38:39]\nv_pk_add_f32 v[32:33], v[32:33], v[36:37]\nv_add_f32 v32, v32, v33")
    red8(32)
    A(f"v_mul_f32 v32, {f32(1/448)}, v32")
    bf16r(A, 32, 32)
    A(f"v_add_f32 v32, {f32(1e-5)}, v32"); bf16r(A, 32, 32)
    A("v_sqrt_f32 v32, v32\ns_nop 0"); bf16r(A, 32, 32)
    A("v_rcp_f32 v18, v32")
    bf16r(A, 16, 16)
    A("v_mov_b32 v17, v16")
    A("v_fma_f32 v19, -v32, v18, 1.0\nv_fma_f32 v18, v19, v18, v18\nv_mov_b32 v19, v18")
    A("v_lshrrev_b32 v20, 2, v4\nv_lshlrev_b32 v20, 2, v20\nv_and_b32 v21, 1, v4\nv_lshl_add_u32 v20, v21, 1, v20")
    A("v_bfe_u32 v21, v3, 1, 3\nv_xor_b32 v22, v20, v21\nv_xor_b32 v23, 1, v22")
    A("v_bfe_u32 v21, v4, 1, 1\nv_lshlrev_b32 v21, 3, v21")
    A(f"v_mul_u32_u24 v24, 896, v3\nv_add3_u32 v24, v24, v21, {XN}" if False else f"v_mul_u32_u24 v24, 896, v3\nv_add_u32 v24, v24, v21\nv_add_u32 v24, {XN}, v24")
    A("v_lshl_add_u32 v22, v22, 4, v24\nv_lshl_add_u32 v23, v23, 4, v24")
    for i in range(28):
        p = XF+2*i
        A(f"v_pk_add_f32 {v(p,2)}, {v(p,2)}, v[16:17] neg_lo:[0,1] neg_hi:[0,1]")
        A(f"v_cvt_pk_bf16_f32 {v(XR+i)}, {v(p)}, {v(p+1)}")
        A(f"v_lshlrev_b32 {v(p)}, 16, {v(XR+i)}\nv_and_b32 {v(p+1)}, 0xffff0000, {v(XR+i)}")
        A(f"v_pk_mul_f32 {v(p,2)}, {v(p,2)}, v[18:19]")
        A(f"v_cvt_pk_bf16_f32 {v(XR+i)}, {v(p)}, {v(p+1)}")
        if i % 4 == 3:
            j = i//4
            A(f"ds_write_b64 v22, {v(XR+4*j,2)} offset:{j*128}\nds_write_b64 v23, {v(XR+4*j+2,2)} offset:{j*128}")
    A("v_and_b32 v3, 15, v1\nv_lshrrev_b32 v4, 4, v1")
    A("s_lshr_b32 s36, s3, 2\ns_and_b32 s37, s3, 3")
    A("s_lshl_b32 s38, s36, 5\nv_add_u32 v5, s38, v3")
    AA = 12
    for mb in range(2):
        A(f"v_add_u32 v6, {16*mb}, v5\nv_bfe_u32 v7, v6, 1, 3\nv_xor_b32 v7, v7, v4")
        A(f"v_mul_u32_u24 v6, 896, v6\nv_add_u32 v6, {XN}, v6\nv_lshl_add_u32 {v(AA+2*mb)}, v7, 4, v6")
        A(f"v_xor_b32 v7, 4, v7\nv_lshl_add_u32 {v(AA+2*mb+1)}, v7, 4, v6")
    A("v_lshrrev_b32 v6, 2, v1")
    A("v_and_b32 v7, 7, v6\nv_lshlrev_b32 v7, 1, v7")
    A("v_bfe_u32 v8, v1, 1, 1\ns_lshl_b32 s38, s37, 2\nv_add_u32 v8, s38, v8")
    A("v_xor_b32 v8, v8, v7\nv_and_b32 v9, 1, v1\nv_lshlrev_b32 v9, 3, v9\nv_lshl_add_u32 v9, v6, 9, v9")
    A("v_lshl_add_u32 v16, v8, 4, v9\nv_xor_b32 v17, 32, v16")
    A("v_bfe_u32 v6, v1, 2, 2\nv_lshl_add_u32 v6, v4, 3, v6\ns_lshl_b32 s38, s36, 5\nv_add_u32 v6, s38, v6")
    A("v_and_b32 v7, 3, v1\ns_lshr_b32 s38, s37, 1\ns_lshl_b32 s38, s38, 2\nv_add_u32 v7, s38, v7")
    A(f"s_and_b32 s38, s37, 1\ns_lshl_b32 s38, s38, 3\ns_lshl_b32 s39, s31, 7\ns_add_u32 s38, s38, s39\ns_add_u32 s38, s38, {XN}")
    for h in range(2):
        A(f"v_add_u32 v8, {4*h}, v6\nv_bfe_u32 v9, v8, 1, 3\nv_xor_b32 v9, v9, v7\nv_mul_u32_u24 v8, 896, v8\nv_lshl_add_u32 v8, v9, 4, v8\nv_add_u32 {v(18+h)}, s38, v8")
    A("s_lshl_b32 s38, s31, 6\ns_lshl_b32 s39, s37, 4\ns_add_u32 s38, s38, s39\nv_add_u32 v8, s38, v3\nv_lshlrev_b32 v8, 12, v8")
    A("s_lshl_b32 s38, s30, 7\ns_lshl_b32 s39, s36, 6\ns_add_u32 s38, s38, s39\nv_lshl_add_u32 v8, v4, 4, v8\nv_add_u32 v20, s38, v8")
    ACC = 32
    for i in range(32): A(f"v_mov_b32 {v(ACC+i)}, 0")
    vm.wait("w0")
    A("s_waitcnt lgkmcnt(0)\ns_barrier")
    A("ds_read_b64_tr_b16 v[24:25], v18\nds_read_b64_tr_b16 v[26:27], v19")
    FB = 64
    def frags(ks):
        b = FB + (ks % 2)*24
        for mb in range(2):
            A(f"ds_read_b128 {v(b+4*mb,4)}, {v(AA+2*mb+(ks%2))} offset:{(ks//2)*128}"); lg.issue(f"f{ks}")
        for zh in range(2):
            for bi in range(2):
                for h in range(2):
                    A(f"ds_read_b64_tr_b16 {v(b+8+(zh*2+bi)*4+2*h,2)}, {v(16+bi)} offset:{(ks%4)*16384+zh*256+h*8192}"); lg.issue(f"f{ks}")
    lg.issue("xnt"); lg.issue("xnt")
    frags(0)
    lg.wait("xnt")
    A(f"buffer_store_dwordx4 v[24:27], v20, s[24:27], 0 offen"); vm.issue("xnt")
    for ks in range(14):
        if ks+1 < 14: vm.wait(f"w{ks+1}")
        lg.waitall()
        if ks+1 < 14: A("s_barrier")
        if ks+4 < 14: dma(ks+4)
        if ks+1 < 14: frags(ks+1)
        b = FB + (ks % 2)*24
        for mb in range(2):
            for bi in range(2):
                A(f"v_mfma_f32_16x16x32_bf16 {v(ACC+16+(mb*2+bi)*4,4)}, {v(b+4*mb,4)}, {v(b+8+(2+bi)*4,4)}, {v(ACC+16+(mb*2+bi)*4,4)}")
                A(f"v_mfma_f32_16x16x32_bf16 {v(ACC+(mb*2+bi)*4,4)}, {v(b+8+bi*4,4)}, {v(b+4*mb,4)}, {v(ACC+(mb*2+bi)*4,4)}")
    if STAMPS: stamp(A, kidx, 2, 10, 44, 148)
    A(f"v_mov_b32 v31, {f32(GC1)}\ns_nop 7")
    Z2 = list(range(ACC+16, ACC+32)); Z1 = list(range(ACC, ACC+16))
    TMP = list(range(64, 80)); P2 = list(range(80, 88)); P1 = list(range(88, 96))
    gelu_block(A, Z2, TMP, 31, P2)
    for i in range(0, 16, 2):
        A(f"v_lshlrev_b32 {v(Z2[i])}, 16, {v(P2[i//2])}\nv_and_b32 {v(Z2[i+1])}, 0xffff0000, {v(P2[i//2])}")
    for mb in range(2):
        for i in range(4):
            a0 = Z2[(mb*2)*4+i]; a1 = Z2[(mb*2+1)*4+i]
            A(f"v_add_f32 {v(96+mb*4+i)}, {v(a0)}, {v(a1)}\nv_mul_f32 {v(104+mb*4+i)}, {v(a0)}, {v(a0)}\nv_fmac_f32 {v(104+mb*4+i)}, {v(a1)}, {v(a1)}")
    for sh in (1, 2, 4, 8):
        for r in range(96, 112):
            A(f"v_add_f32_dpp {v(r)}, {v(r)}, {v(r)} row_ror:{sh} row_mask:0xf bank_mask:0xf")
    A(f"s_lshl_b32 s38, s37, 9\ns_lshl_b32 s39, s36, 8\ns_add_u32 s38, s38, s39\ns_add_u32 s38, s38, {ST}\nv_lshlrev_b32 v6, 5, v4\nv_add_u32 v6, s38, v6")
    A("v_cmp_eq_u32 vcc, 0, v3\ns_and_saveexec_b64 s[40:41], vcc")
    for mb in range(2):
        for i in range(4):
            A(f"ds_write2_b32 v6, {v(96+mb*4+i)}, {v(104+mb*4+i)} offset0:{mb*32+i*2} offset1:{mb*32+i*2+1}")
    A("s_mov_b64 exec, s[40:41]\ns_waitcnt lgkmcnt(0)\ns_barrier")
    A(f"s_cmp_lg_u32 s3, 0\ns_cbranch_scc1 {name}_nopub")
    A(f"v_lshlrev_b32 v6, 3, v1\nv_add_u32 v7, {ST}, v6")
    for wn in range(4): A(f"ds_read_b64 {v(96+2*wn,2)}, v7 offset:{wn*512}")
    A(f"s_mul_i32 s38, s30, {7*512}\ns_lshl_b32 s39, s31, 9\ns_add_u32 s38, s38, s39\ns_add_u32 s38, s38, {WS_STAT}")
    A("s_waitcnt lgkmcnt(0)\nv_pk_add_f32 v[96:97], v[96:97], v[98:99]\nv_pk_add_f32 v[100:101], v[100:101], v[102:103]\nv_pk_add_f32 v[96:97], v[96:97], v[100:101]")
    A("buffer_store_dwordx2 v[96:97], v6, s[24:27], s38 offen sc1")
    A("s_waitcnt vmcnt(0)")
    A("s_lshl_b32 s38, s30, 2\nv_mov_b32 v6, s38\nv_mov_b32 v7, 1\nv_cmp_eq_u32 vcc, 0, v1\ns_and_saveexec_b64 s[40:41], vcc")
    A("global_atomic_add v6, v7, s[8:9] sc1\ns_mov_b64 exec, s[40:41]")
    A.label(f"{name}_nopub")
    gelu_block(A, Z1, TMP, 31, P1)
    A(f"s_lshl_b32 s38, s30, 2\ns_lshl_b32 s39, s36, 1\ns_add_u32 s38, s38, s39\ns_mul_i32 s38, s38, 56\ns_lshl_b32 s39, s31, 3\ns_add_u32 s38, s38, s39\ns_lshl_b32 s39, s37, 1\ns_add_u32 s38, s38, s39\ns_lshl_b32 s38, s38, 9\ns_add_u32 s38, s38, {WS_Z1F}")
    A(f"s_add_u32 s39, s38, {56*512}\nv_lshlrev_b32 v6, 3, v1")
    for mb in range(2):
        for bi in range(2):
            A(f"buffer_store_dwordx2 {v(P1[(mb*2+bi)*2],2)}, v6, s[24:27], {'s39' if mb else 's38'} offen offset:{bi*512}")
    A(f"s_cmp_lg_u32 s3, 0\ns_cbranch_scc1 {name}_nopoll")
    A(f"s_lshl_b32 s38, s30, 2\nv_mov_b32 v6, s38\ns_mov_b32 s42, 0")
    A.label(f"{name}_poll")
    A("global_load_dword v7, v6, s[8:9] sc1\ns_waitcnt vmcnt(0)\nv_readfirstlane_b32 s39, v7")
    A(f"s_add_u32 s42, s42, 1\ns_cmp_gt_u32 s42, 200000\ns_cbranch_scc1 {name}_polled")
    A(f"s_cmp_ge_u32 s39, 7\ns_cbranch_scc1 {name}_polled\ns_sleep 1\ns_branch {name}_poll")
    A.label(f"{name}_polled")
    A(f"v_lshlrev_b32 v6, 3, v1\ns_mul_i32 s38, s30, {7*512}\ns_add_u32 s38, s38, {WS_STAT}")
    for c in range(7): A(f"buffer_load_dwordx2 {v(96+2*c,2)}, v6, s[24:27], s38 offen offset:{c*512} sc1")
    A("s_waitcnt vmcnt(0)")
    for c in range(1, 7): A(f"v_pk_add_f32 v[96:97], v[96:97], {v(96+2*c,2)}")
    A(f"v_mul_f32 v96, {f32(1/896)}, v96\nv_mul_f32 v97, {f32(1/896)}, v97\nv_fma_f32 v97, -v96, v96, v97\nv_max_f32 v97, 0, v97")
    bf16r(A, 97, 97); A(f"v_add_f32 v97, {f32(1e-5)}, v97"); bf16r(A, 97, 97)
    A("v_sqrt_f32 v97, v97\ns_nop 0"); bf16r(A, 97, 97)
    A("v_rcp_f32 v98, v97"); bf16r(A, 96, 96)
    A("v_fma_f32 v99, -v97, v98, 1.0\nv_fma_f32 v97, v99, v98, v98")
    A(f"v_add_u32 v6, {ST2}, v6\nds_write_b64 v6, v[96:97]\ns_waitcnt lgkmcnt(0)")
    A.label(f"{name}_nopoll")
    A("s_barrier")
    A(f"s_lshl_b32 s38, s36, 8\ns_add_u32 s38, s38, {ST2}\nv_lshlrev_b32 v6, 5, v4\nv_add_u32 v6, s38, v6")
    for mb in range(2):
        A(f"ds_read_b128 {v(96+mb*8,4)}, v6 offset:{mb*128}\nds_read_b128 {v(100+mb*8,4)}, v6 offset:{mb*128+16}")
    A("s_waitcnt lgkmcnt(0)")
    for mb in range(2):
        for bi in range(2):
            z = Z2[(mb*2+bi)*4:(mb*2+bi)*4+4]; p = P2[(mb*2+bi)*2:(mb*2+bi)*2+2]
            for i in range(4): A(f"v_sub_f32 {v(z[i])}, {v(z[i])}, {v(96+mb*8+2*i)}")
            for h in range(2): A(f"v_cvt_pk_bf16_f32 {v(p[h])}, {v(z[2*h])}, {v(z[2*h+1])}")
            for h in range(2): A(f"v_lshlrev_b32 {v(z[2*h])}, 16, {v(p[h])}\nv_and_b32 {v(z[2*h+1])}, 0xffff0000, {v(p[h])}")
            for i in range(4): A(f"v_mul_f32 {v(z[i])}, {v(z[i])}, {v(96+mb*8+2*i+1)}")
            for h in range(2): A(f"v_cvt_pk_bf16_f32 {v(64+bi*4+mb*2+h)}, {v(z[2*h])}, {v(z[2*h+1])}")
    A("s_nop 1")
    for bi in range(2):
        for h in range(2):
            X = 64+bi*4+h; Y = 64+bi*4+2+h
            A(f"v_permlane32_swap_b32 {v(X)}, {v(Y)}")
    A("s_nop 1")
    for bi in range(2):
        for h in range(2):
            X = 64+bi*4+h; Y = 64+bi*4+2+h
            A(f"v_permlane16_swap_b32 {v(X)}, {v(Y)}")
    A(f"s_lshl_b32 s38, s31, 2\ns_add_u32 s38, s38, s37\ns_lshl_b32 s38, s38, 6\ns_lshl_b32 s39, s30, 1\ns_add_u32 s38, s38, s39\ns_add_u32 s38, s38, s36\ns_lshl_b32 s38, s38, 11\ns_add_u32 s38, s38, {WS_Z2F}")
    A("v_lshlrev_b32 v6, 4, v1\ns_nop 0")
    for bi in range(2):
        A(f"buffer_store_dwordx4 {v(64+bi*4,4)}, v6, s[24:27], s38 offen offset:{bi*1024}")
    if STAMPS:
        A("s_waitcnt vmcnt(0)"); stamp(A, kidx, 1, 10, 44, 148)
    A("s_endpgm")
    A.label(f"{name}_prep")
    srd(A, 16, 12, 896*896)
    srd(A, 24, 10, WS_END)
    srd(A, 20, 14, 2048*4096)
    A(f"s_sub_u32 s30, s2, {NG}\ns_mul_i32 s31, s30, {32*896}\nv_lshlrev_b32 v3, 4, v0")
    A(f"s_cmp_ge_u32 s30, 28\ns_cbranch_scc1 {name}_pf")
    for i in range(4):
        if i == 3: A("v_cmp_gt_u32 vcc, 256, v0\ns_and_saveexec_b64 s[40:41], vcc")
        A(f"s_add_u32 s32, s31, {i*8192}\nbuffer_load_dwordx4 {v(8+4*i,4)}, v3, s[16:19], s32 offen")
    A("s_waitcnt vmcnt(0)\nds_write_b128 v3, v[20:23] offset:24576\ns_mov_b64 exec, s[40:41]")
    for i in range(3): A(f"ds_write_b128 v3, {v(8+4*i,4)} offset:{i*8192}")
    A("s_waitcnt lgkmcnt(0)\ns_barrier")
    A("v_lshrrev_b32 v4, 2, v1\nv_mul_u32_u24 v4, 896, v4\nv_and_b32 v5, 3, v1\nv_lshl_add_u32 v4, v5, 5, v4\ns_lshr_b32 s32, s3, 2\ns_lshl_b32 s32, s32, 7\ns_and_b32 s33, s3, 3\ns_lshl_b32 s33, s33, 3\ns_add_u32 s32, s32, s33\nv_add_u32 v4, s32, v4")
    A(f"v_lshlrev_b32 v5, 4, v1\ns_mul_i32 s33, s3, {28*1024}\ns_lshl_b32 s34, s30, 10\ns_add_u32 s33, s33, s34\ns_add_u32 s33, s33, {WS_WOF}")
    for i in range(4):
        if i == 3: A(f"s_cmp_ge_u32 s3, 4\ns_cbranch_scc1 {name}_pf")
        A(f"ds_read_b64_tr_b16 {v(8+4*i,2)}, v4 offset:{i*256}\nds_read_b64_tr_b16 {v(10+4*i,2)}, v4 offset:{i*256+16*896}")
        A(f"s_add_u32 s34, s33, {i*8*28*1024}\ns_waitcnt lgkmcnt(0)\nbuffer_store_dwordx4 {v(8+4*i,4)}, v5, s[24:27], s34 offen")
    A.label(f"{name}_pf")
    if PF:
        A("s_and_b32 s32, s30, 7\ns_lshl_b32 s32, s32, 2\ns_lshr_b32 s33, s30, 3\ns_add_u32 s32, s32, s33\ns_lshl_b32 s32, s32, 18")
        for i in range(32):
            A(f"buffer_load_dwordx4 {v(24+4*i,4)}, v3, s[20:23], s32 offen\ns_add_u32 s32, s32, 8192")
        A("s_waitcnt vmcnt(0)")
        if STAMPS: stamp(A, kidx, 1, 10, 44, 148)
    A.label(f"{name}_end")
    A.end_kernel(name, 152, sgpr=64)
    A.launch(name, NG+NPREP, 512, LDS)
```

```python
from gen import *
import os
NG = 224
def gen_gemm2(A, name, kidx, STAMPS):
    N = 6
    srd(A, 16, 4, 2048*4096)
    srd(A, 20, 6, 4096)
    srd(A, 24, 10, WS_END)
    vm = Trk(A, "vmcnt", 63); lg = Trk(A, "lgkmcnt", 15)
    A("v_and_b32 v3, 15, v1\nv_lshrrev_b32 v4, 4, v1")
    A("v_lshrrev_b32 v5, 3, v1\ns_lshl_b32 s32, s3, 4\nv_add_u32 v5, s32, v5\nv_and_b32 v6, 7, v1")
    for e in range(2):
        A(f"v_add_u32 v7, {8*e}, v5\nv_bfe_u32 v8, v7, 1, 3\nv_xor_b32 v8, v8, v6\nv_lshlrev_b32 v7, 12, v7\nv_lshl_add_u32 {v(10+e)}, v8, 4, v7")
    A("s_lshl_b32 s33, s30, 18")
    A("s_lshl_b32 s34, s3, 11")
    A(f"s_lshl_b32 s35, s31, 2\ns_add_u32 s35, s35, s3\ns_lshl_b32 s36, s35, 17\ns_add_u32 s36, s36, {WS_Z2F}\nv_lshlrev_b32 v9, 4, v1")
    ACC = 16; FB = 48; ZB = 112; Z1 = 208; BS = 224
    def dma(st):
        A(f"s_add_u32 m0, s34, {(st%N)*8192}\ns_add_u32 s37, s33, {st*128}")
        A(f"buffer_load_dwordx4 v10, s[16:19], s37 offen lds"); vm.issue(f"w{st}")
        A(f"s_add_u32 m0, m0, 1024\ns_nop 0")
        A(f"buffer_load_dwordx4 v11, s[16:19], s37 offen lds"); vm.issue(f"w{st}")
    def zl(st):
        L = [f"s_add_u32 s38, s36, {st*4096}"]
        for j in range(4):
            L.append((f"buffer_load_dwordx4 {v(ZB+(st%N)*16+4*j,4)}, v9, s[24:27], s38 offen offset:{j*1024}", f"z{st}"))
        return L
    def emit(L):
        for x in L:
            if isinstance(x, tuple): A(x[0]); vm.issue(x[1])
            else: A(x)
    for st in range(N): dma(st); emit(zl(st))
    A("v_lshrrev_b32 v5, 1, v3\nv_xor_b32 v5, v5, v4\nv_lshlrev_b32 v6, 7, v3\nv_lshl_add_u32 v12, v5, 4, v6\nv_xor_b32 v13, 64, v12")
    for i in range(32): A(f"v_mov_b32 {v(ACC+i)}, 0")
    def frags(st):
        b = FB + (st % 2)*32
        for p in range(2):
            for tb in range(4):
                A(f"ds_read_b128 {v(b+(p*4+tb)*4,4)}, {v(12+p)} offset:{(st%N)*8192+tb*2048}"); lg.issue(f"f{st}")
    vm.wait("w0"); A("s_barrier"); frags(0)
    for st in range(32):
        if st+1 < 32: vm.wait(f"w{st+1}")
        else: vm.wait(f"z{st}")
        lg.waitall()
        if st+1 < 32: A("s_barrier")
        if st+N < 32: dma(st+N)
        if st+1 < 32: frags(st+1)
        b = FB + (st % 2)*32; zb = ZB + (st % N)*16
        for p in range(2):
            for tb in range(4):
                for bi in range(2):
                    A(f"v_mfma_f32_16x16x32_bf16 {v(ACC+(bi*4+tb)*4,4)}, {v(zb+(p*2+bi)*4,4)}, {v(b+(p*4+tb)*4,4)}, {v(ACC+(bi*4+tb)*4,4)}")
        if st+N < 32: emit(zl(st+N))
        if st == 32-N:
            A(f"s_lshl_b32 s39, s30, 2\ns_mul_i32 s39, s39, 56\ns_lshl_b32 s40, s35, 1\ns_add_u32 s39, s39, s40\ns_lshl_b32 s39, s39, 9\ns_add_u32 s39, s39, {WS_Z1F}\nv_lshlrev_b32 v5, 3, v1")
            for tb in range(4):
                A(f"s_add_u32 s40, s39, {tb*56*512}")
                for bi in range(2):
                    A(f"buffer_load_dwordx2 {v(Z1+(tb*2+bi)*2,2)}, v5, s[24:27], s40 offen offset:{bi*512}"); vm.issue("e")
            A("s_lshl_b32 s40, s30, 7\nv_lshlrev_b32 v6, 1, v3")
            for tb in range(4):
                A(f"buffer_load_ushort {v(BS+tb)}, v6, s[20:23], s40 offen offset:{tb*32}"); vm.issue("e")
    if STAMPS: stamp(A, kidx, 2, 10, 44, 240)
    vm.waitall()
    A(f"s_lshl_b32 s39, s30, 2\ns_mul_i32 s39, s39, 28\ns_add_u32 s39, s39, s35\ns_lshl_b32 s39, s39, 10\ns_add_u32 s39, s39, {WS_HF}")
    for tb in range(4): A(f"v_lshlrev_b32 {v(BS+tb)}, 16, {v(BS+tb)}")
    A("s_nop 4")
    T = FB
    for tb in range(4):
        for bi in range(2):
            ac = ACC+(bi*4+tb)*4; z = Z1+(tb*2+bi)*2; t = T+(tb*2+bi)*6
            for h in range(2): A(f"v_cvt_pk_bf16_f32 {v(t+h)}, {v(ac+2*h)}, {v(ac+2*h+1)}")
            for h in range(2): A(f"v_lshlrev_b32 {v(ac+2*h)}, 16, {v(t+h)}\nv_and_b32 {v(ac+2*h+1)}, 0xffff0000, {v(t+h)}")
            for i in range(4): A(f"v_add_f32 {v(ac+i)}, {v(ac+i)}, {v(BS+tb)}")
            for h in range(2): A(f"v_cvt_pk_bf16_f32 {v(t+h)}, {v(ac+2*h)}, {v(ac+2*h+1)}")
            for h in range(2): A(f"v_lshlrev_b32 {v(ac+2*h)}, 16, {v(t+h)}\nv_and_b32 {v(ac+2*h+1)}, 0xffff0000, {v(t+h)}")
            for h in range(2): A(f"v_lshlrev_b32 {v(t+2+2*h)}, 16, {v(z+h)}\nv_and_b32 {v(t+3+2*h)}, 0xffff0000, {v(z+h)}")
            for i in range(4): A(f"v_mul_f32 {v(ac+i)}, {v(ac+i)}, {v(t+2+i)}")
            for h in range(2): A(f"v_cvt_pk_bf16_f32 {v(z+h)}, {v(ac+2*h)}, {v(ac+2*h+1)}")
        A(f"s_add_u32 s40, s39, {tb*28*1024}")
        A(f"buffer_store_dwordx4 {v(Z1+tb*4,4)}, v9, s[24:27], s40 offen")
    if STAMPS:
        A("s_waitcnt vmcnt(0)"); stamp(A, kidx, 1, 10, 44, 240)
    A("s_endpgm")

def gen_k2(A, name, kidx, STAMPS=False):
    SSM = "A" in os.environ.get("PARTS", "")
    NS = 224 if SSM else 0
    A.begin_kernel(name)
    A(f"s_cmp_ge_u32 s2, {NG+NS}\ns_cbranch_scc1 {name}_end")
    A("s_load_dwordx4 s[4:7], s[0:1], 72")
    A("s_load_dwordx2 s[10:11], s[0:1], 112")
    A("v_and_b32 v1, 63, v0\nv_lshrrev_b32 v2, 6, v0")
    A("s_nop 0\nv_readfirstlane_b32 s3, v2")
    SF = int(os.environ.get("SF", "1"))
    if SSM and not SF: A(f"s_cmp_ge_u32 s2, {NG}\ns_cbranch_scc1 {name}_ssm")
    if SSM and SF: A(f"s_cmp_lt_u32 s2, {NS}\ns_cbranch_scc1 {name}_ssm")
    A(f"s_lshr_b32 s28, s2, 3")
    if SSM and SF: A(f"s_sub_u32 s28, s28, {NS//8}")
    A(f"s_mul_i32 s29, s28, 37\ns_lshr_b32 s29, s29, 8")
    A("s_mul_i32 s30, s29, 7\ns_sub_u32 s31, s28, s30")
    A("s_and_b32 s30, s2, 7\ns_lshl_b32 s30, s30, 2\ns_add_u32 s30, s30, s29")
    A("s_waitcnt lgkmcnt(0)")
    if STAMPS: stamp(A, kidx, 0, 10, 44, 240)
    gen_gemm2(A, name, kidx, STAMPS)
    lds = 6*8192
    if SSM:
        import ssm
        A.label(f"{name}_ssm")
        lds = max(lds, ssm.gen_ssm(A, name, kidx, STAMPS, 0 if SF else NG))
    A.label(f"{name}_end")
    A.end_kernel(name, 244, sgpr=96)
    A.launch(name, NG+NS, 256, lds)
```

```python
from gen import *
from k1 import bf16r, gelu_block, GC0, GC1, LOG2E
from ssm import cmul, PITCH
import math, os
STI = int(os.environ.get("STI", "30"))
NR = int(os.environ.get("NR", "6"))
def gen_kf(A, name, kidx, STAMPS=False):
    NG = 224; NAUX = 32
    XN = 65536
    STG = 57*PITCH
    ST = 8*STG; ST2 = ST + 2048
    CH = 56768
    RING2 = 2*CH
    LDS = RING2 + NR*8192
    assert LDS <= 163840
    def stp(slot):
        if STAMPS: stamp(A, kidx, slot, 10, 76, 132)
    def arrive(base, sidx, val, pre=""):
        L = A.newlabel("arr")
        A(f"s_cmp_lg_u32 s3, 0\ns_cbranch_scc1 {L}")
        if pre: A(pre)
        A(f"s_lshl_b32 s38, {sidx}, 2\nv_mov_b32 v6, s38\nv_mov_b32 v7, {val}\ns_mov_b64 s[40:41], exec\ns_mov_b64 exec, 1")
        A(f"global_atomic_add v6, v7, s[8:9] offset:{base*4} sc1\ns_mov_b64 exec, s[40:41]")
        A.label(L)
    def poll(conds):
        A("v_mov_b32 v21, 0\nv_mov_b32 v22, 0\nv_mov_b32 v23, 0")
        for i, (base, sidx, sh, thr) in enumerate(conds):
            if sidx: A(f"s_lshl_b32 s38, {sidx}, 2\ns_add_u32 s38, s38, {base*4}")
            else: A(f"s_mov_b32 s38, {base*4}")
            A(f"v_writelane_b32 v21, s38, {i}\nv_writelane_b32 v22, {sh}, {i}\nv_writelane_b32 v23, {thr}, {i}")
        A("global_load_dword v28, v21, s[8:9] sc1")
    def poll_post():
        L = A.newlabel("poll"); D = A.newlabel("polld")
        A("s_mov_b32 s42, 0")
        A.label(L)
        A("s_waitcnt vmcnt(0)\nv_lshrrev_b32 v28, v22, v28\nv_and_b32 v28, 255, v28\nv_cmp_lt_u32 vcc, v28, v23")
        A(f"s_add_u32 s42, s42, 1\ns_cmp_gt_u32 s42, 30000\ns_cbranch_scc1 {D}")
        A(f"s_cmp_eq_u64 vcc, 0\ns_cbranch_scc1 {D}\ns_sleep 2\nglobal_load_dword v28, v21, s[8:9] sc1\ns_branch {L}")
        A.label(D)
    WS_FL = WS_STAT + 262144
    SLP = int(os.environ.get("SLP", "2"))
    def setflag(sreg):
        A(f"v_mov_b32 v6, {sreg}\nv_mov_b32 v7, 1\ns_mov_b64 exec, 1\nbuffer_store_dword v7, v6, s[24:27], 0 offen sc1\ns_mov_b64 exec, -1")
    def pollflags(n, stride=4):
        L = A.newlabel("pf"); D = A.newlabel("pfd")
        A(f"v_mul_u32_u24 v6, {stride}, v1\ns_mov_b32 s42, 0\ns_mov_b32 exec_hi, 0\ns_mov_b32 exec_lo, {hex((1<<n)-1)}")
        A.label(L)
        A("buffer_load_dword v7, v6, s[24:27], s38 offen sc1\ns_waitcnt vmcnt(0)\nv_cmp_eq_u32 vcc, 0, v7")
        A(f"s_add_u32 s42, s42, 1\ns_cmp_gt_u32 s42, 30000\ns_cbranch_scc1 {D}")
        A(f"s_cmp_eq_u64 vcc, 0\ns_cbranch_scc1 {D}\ns_sleep {SLP}\ns_branch {L}")
        A.label(D)
        A("s_mov_b64 exec, -1")
    A.begin_kernel(name)
    A(f"s_cmp_ge_u32 s2, {NG+NAUX}\ns_cbranch_scc1 {name}_end")
    A("s_load_dwordx2 s[4:5], s[0:1], 0\ns_load_dwordx2 s[6:7], s[0:1], 64\ns_load_dwordx4 s[8:11], s[0:1], 104")
    A("s_load_dwordx2 s[12:13], s[0:1], 88\ns_load_dwordx2 s[14:15], s[0:1], 72")
    A("s_load_dwordx8 s[48:55], s[0:1], 8\ns_load_dwordx4 s[56:59], s[0:1], 40\ns_load_dwordx2 s[60:61], s[0:1], 80\ns_load_dwordx2 s[62:63], s[0:1], 96")
    A("v_and_b32 v1, 63, v0\nv_lshrrev_b32 v2, 6, v0")
    A("s_nop 0\nv_readfirstlane_b32 s3, v2")
    A("s_and_b32 s28, s2, 7\ns_lshr_b32 s29, s2, 3\ns_and_b32 s32, s28, 1\ns_lshl_b32 s32, s32, 2")
    A("s_and_b32 s30, s29, 7\ns_lshr_b32 s31, s29, 3\ns_add_u32 s33, s31, s32\ns_add_u32 s34, s30, s32")
    A("s_cmp_ge_u32 s29, 24\ns_cselect_b32 s31, 3, s33\ns_cselect_b32 s30, s34, s30")
    A("s_lshr_b32 s28, s28, 1\ns_lshl_b32 s28, s28, 3\ns_add_u32 s30, s30, s28")
    A("s_lshl_b32 s64, s31, 6\ns_lshl_b32 s65, s30, 1\ns_add_u32 s64, s64, s65\ns_lshr_b32 s65, s3, 2\ns_add_u32 s64, s64, s65\ns_and_b32 s65, s3, 3")
    A("s_waitcnt lgkmcnt(0)")
    stp(0)
    A(f"s_cmp_ge_u32 s2, {NG}\ns_cbranch_scc1 {name}_prep")
    srd(A, 16, 4, 2048*896); srd(A, 20, 6, 448*3584); srd(A, 24, 10, WS_END)
    PR = 152
    A("s_lshr_b32 s36, s3, 2\ns_and_b32 s37, s3, 3")
    A(f"s_lshl_b32 s32, s31, 2\ns_add_u32 s32, s32, s37\ns_lshl_b32 s32, s32, 1\ns_add_u32 s32, s32, s36\ns_lshl_b32 s32, s32, 2\ns_lshl_b32 s33, s30, 8\ns_add_u32 s32, s32, s33\ns_add_u32 s96, s32, {WS_FL}")
    A(f"s_lshl_b32 s32, s31, 10\ns_lshl_b32 s33, s3, 7\ns_add_u32 s33, s33, s32\ns_lshl_b32 s34, s30, 2\ns_add_u32 s33, s33, s34\ns_add_u32 s97, s33, {WS_FL+8192}")
    A(f"s_lshl_b32 s33, s37, 8\ns_add_u32 s33, s33, s32\ns_lshl_b32 s34, s30, 3\ns_add_u32 s33, s33, s34\ns_lshl_b32 s34, s36, 2\ns_add_u32 s33, s33, s34\ns_add_u32 s98, s33, {WS_FL+16384}")
    A("v_mov_b32 v6, s96\nv_writelane_b32 v6, s97, 1\nv_writelane_b32 v6, s98, 2\nv_mov_b32 v7, 0\ns_mov_b64 exec, 7\nbuffer_store_dword v7, v6, s[24:27], 0 offen sc1\ns_mov_b64 exec, -1")
    A(f"s_mul_i32 s99, s30, {7*512}\ns_add_u32 s99, s99, {WS_STAT}\ns_lshl_b32 s33, s31, 9\ns_add_u32 s33, s33, s99\nv_lshlrev_b32 v6, 2, v0\nv_mov_b32 v7, -1\ns_cmp_ge_u32 s3, 2\ns_cbranch_scc1 {name}_nc")
    A("buffer_store_dword v7, v6, s[24:27], s33 offen sc1")
    A.label(f"{name}_nc")
    def param_loads():
        A("s_lshl_b32 s33, s64, 9\ns_lshl_b32 s34, s65, 7\ns_add_u32 s33, s33, s34\nv_lshlrev_b32 v6, 1, v1\nv_add_u32 v6, s33, v6\ns_lshl_b32 s33, s64, 1\nv_mov_b32 v7, s33")
        for k in range(4): A(f"global_load_ushort {v(PR+k)}, v6, s[{48+2*k}:{49+2*k}]"); vm.issue("x")
        A(f"global_load_ushort {v(PR+4)}, v7, s[56:57]"); vm.issue("x")
        A(f"global_load_ushort {v(PR+5)}, v7, s[58:59]"); vm.issue("x")
    vm = Trk(A, "vmcnt", 63); lg = Trk(A, "lgkmcnt", 15)
    A("v_lshrrev_b32 v3, 3, v0\nv_and_b32 v4, 7, v0")
    A(f"s_mul_i32 s32, s30, {64*896}")
    A(f"v_mul_u32_u24 v5, 896, v3\nv_lshl_add_u32 v5, v4, 4, v5")
    XR = 64
    for i in range(7):
        A(f"buffer_load_dwordx4 {v(XR+4*i,4)}, v5, s[16:19], s32 offen offset:{i*128}"); vm.issue("x")
    param_loads()
    A("v_lshrrev_b32 v6, 5, v1\nv_and_b32 v7, 31, v1")
    A("v_lshl_add_u32 v8, v2, 2, v6")
    for e in range(2):
        d = 10+e
        A(f"v_add_u32 v9, {2*e}, v8")
        A(f"v_and_b32 v12, 7, v9\nv_lshlrev_b32 v12, 1, v12\nv_xor_b32 v12, v12, v7")
        A(f"v_and_b32 v13, 15, v12\nv_lshlrev_b32 v13, 4, v13")
        A(f"v_lshrrev_b32 v12, 4, v12\nv_mul_u32_u24 v12, 1792, v12")
        A(f"v_mul_u32_u24 v{d}, 3584, v9\nv_add3_u32 v{d}, v{d}, v12, v13")
    A(f"s_lshl_b32 s33, s31, 8")
    A(f"s_lshl_b32 s34, s3, 11")
    def dma(st):
        A(f"s_add_u32 m0, s34, {(st%4)*16384}\ns_add_u32 s35, s33, {st*32*3584}")
        A(f"buffer_load_dwordx4 v10, s[20:23], s35 offen lds"); vm.issue(f"w{st}")
        A(f"s_add_u32 m0, m0, 1024\ns_nop 0")
        A(f"buffer_load_dwordx4 v11, s[20:23], s35 offen lds"); vm.issue(f"w{st}")
    for st in range(4): dma(st)
    XF = 96
    vm.wait("x")
    for i in range(28):
        A(f"v_lshlrev_b32 {v(XF+2*i)}, 16, {v(XR+i)}\nv_and_b32 {v(XF+2*i+1)}, 0xffff0000, {v(XR+i)}")
    for c in range(4): A(f"v_pk_add_f32 {v(16+2*c,2)}, {v(XF+2*c,2)}, {v(XF+8+2*c,2)}")
    for i in range(8, 28): A(f"v_pk_add_f32 {v(16+2*(i%4),2)}, {v(16+2*(i%4),2)}, {v(XF+2*i,2)}")
    A("v_pk_add_f32 v[16:17], v[16:17], v[18:19]\nv_pk_add_f32 v[20:21], v[20:21], v[22:23]\nv_pk_add_f32 v[16:17], v[16:17], v[20:21]\nv_add_f32 v16, v16, v17")
    def red8(r):
        A(f"s_nop 1\nv_add_f32_dpp {v(r)}, {v(r)}, {v(r)} quad_perm:[1,0,3,2] row_mask:0xf bank_mask:0xf")
        A(f"s_nop 1\nv_add_f32_dpp {v(r)}, {v(r)}, {v(r)} quad_perm:[2,3,0,1] row_mask:0xf bank_mask:0xf")
        A(f"s_nop 1\nv_add_f32_dpp {v(r)}, {v(r)}, {v(r)} row_half_mirror row_mask:0xf bank_mask:0xf")
    red8(16)
    A(f"v_mul_f32 v16, {f32(1/448)}, v16\nv_mov_b32 v17, v16")
    for i in range(28):
        t = 24+2*(i%4)
        A(f"v_pk_add_f32 {v(t,2)}, {v(XF+2*i,2)}, v[16:17] neg_lo:[0,1] neg_hi:[0,1]")
        if i < 4: A(f"v_pk_mul_f32 {v(32+2*i,2)}, {v(t,2)}, {v(t,2)}")
        else: A(f"v_pk_fma_f32 {v(32+2*(i%4),2)}, {v(t,2)}, {v(t,2)}, {v(32+2*(i%4),2)}")
    A("v_pk_add_f32 v[32:33], v[32:33], v[34:35]\nv_pk_add_f32 v[36:37], v[36:37], v[38:39]\nv_pk_add_f32 v[32:33], v[32:33], v[36:37]\nv_add_f32 v32, v32, v33")
    red8(32)
    A(f"v_mul_f32 v32, {f32(1/448)}, v32")
    bf16r(A, 32, 32)
    A(f"v_add_f32 v32, {f32(1e-5)}, v32"); bf16r(A, 32, 32)
    A("v_sqrt_f32 v32, v32\ns_nop 0"); bf16r(A, 32, 32)
    A("v_rcp_f32 v18, v32")
    bf16r(A, 16, 16)
    A("v_mov_b32 v17, v16")
    A("v_fma_f32 v19, -v32, v18, 1.0\nv_fma_f32 v18, v19, v18, v18\nv_mov_b32 v19, v18")
    A("v_lshrrev_b32 v20, 2, v4\nv_lshlrev_b32 v20, 2, v20\nv_and_b32 v21, 1, v4\nv_lshl_add_u32 v20, v21, 1, v20")
    A("v_bfe_u32 v21, v3, 1, 3\nv_xor_b32 v22, v20, v21\nv_xor_b32 v23, 1, v22")
    A("v_bfe_u32 v21, v4, 1, 1\nv_lshlrev_b32 v21, 3, v21")
    A(f"v_mul_u32_u24 v24, 896, v3\nv_add3_u32 v24, v24, v21, {XN}" if False else f"v_mul_u32_u24 v24, 896, v3\nv_add_u32 v24, v24, v21\nv_add_u32 v24, {XN}, v24")
    A("v_lshl_add_u32 v22, v22, 4, v24\nv_lshl_add_u32 v23, v23, 4, v24")
    for i in range(28):
        p = XF+2*i
        A(f"v_pk_add_f32 {v(p,2)}, {v(p,2)}, v[16:17] neg_lo:[0,1] neg_hi:[0,1]")
        A(f"v_cvt_pk_bf16_f32 {v(XR+i)}, {v(p)}, {v(p+1)}")
        A(f"v_lshlrev_b32 {v(p)}, 16, {v(XR+i)}\nv_and_b32 {v(p+1)}, 0xffff0000, {v(XR+i)}")
        A(f"v_pk_mul_f32 {v(p,2)}, {v(p,2)}, v[18:19]")
        A(f"v_cvt_pk_bf16_f32 {v(XR+i)}, {v(p)}, {v(p+1)}")
        if i % 4 == 3:
            j = i//4
            A(f"ds_write_b64 v22, {v(XR+4*j,2)} offset:{j*128}\nds_write_b64 v23, {v(XR+4*j+2,2)} offset:{j*128}")
    A("v_and_b32 v3, 15, v1\nv_lshrrev_b32 v4, 4, v1")
    A("s_lshr_b32 s36, s3, 2\ns_and_b32 s37, s3, 3")
    A("s_lshl_b32 s38, s36, 5\nv_add_u32 v5, s38, v3")
    AA = 12
    for mb in range(2):
        A(f"v_add_u32 v6, {16*mb}, v5\nv_bfe_u32 v7, v6, 1, 3\nv_xor_b32 v7, v7, v4")
        A(f"v_mul_u32_u24 v6, 896, v6\nv_add_u32 v6, {XN}, v6\nv_lshl_add_u32 {v(AA+2*mb)}, v7, 4, v6")
        A(f"v_xor_b32 v7, 4, v7\nv_lshl_add_u32 {v(AA+2*mb+1)}, v7, 4, v6")
    A("v_lshrrev_b32 v6, 2, v1")
    A("v_and_b32 v7, 7, v6\nv_lshlrev_b32 v7, 1, v7")
    A("v_bfe_u32 v8, v1, 1, 1\ns_lshl_b32 s38, s37, 2\nv_add_u32 v8, s38, v8")
    A("v_xor_b32 v8, v8, v7\nv_and_b32 v9, 1, v1\nv_lshlrev_b32 v9, 3, v9\nv_lshl_add_u32 v9, v6, 9, v9")
    A("v_lshl_add_u32 v16, v8, 4, v9\nv_xor_b32 v17, 32, v16")
    A("v_bfe_u32 v6, v1, 2, 2\nv_lshl_add_u32 v6, v4, 3, v6\ns_lshl_b32 s38, s36, 5\nv_add_u32 v6, s38, v6")
    A("v_and_b32 v7, 3, v1\ns_lshr_b32 s38, s37, 1\ns_lshl_b32 s38, s38, 2\nv_add_u32 v7, s38, v7")
    A(f"s_and_b32 s38, s37, 1\ns_lshl_b32 s38, s38, 3\ns_lshl_b32 s39, s31, 7\ns_add_u32 s38, s38, s39\ns_add_u32 s38, s38, {XN}")
    for h in range(2):
        A(f"v_add_u32 v8, {4*h}, v6\nv_bfe_u32 v9, v8, 1, 3\nv_xor_b32 v9, v9, v7\nv_mul_u32_u24 v8, 896, v8\nv_lshl_add_u32 v8, v9, 4, v8\nv_add_u32 {v(18+h)}, s38, v8")
    A("s_lshl_b32 s38, s31, 6\ns_lshl_b32 s39, s37, 4\ns_add_u32 s38, s38, s39\nv_add_u32 v8, s38, v3\nv_lshlrev_b32 v8, 12, v8")
    A("s_lshl_b32 s38, s30, 7\ns_lshl_b32 s39, s36, 6\ns_add_u32 s38, s38, s39\nv_lshl_add_u32 v8, v4, 4, v8\nv_add_u32 v20, s38, v8")
    ACC = 32
    for i in range(32): A(f"v_mov_b32 {v(ACC+i)}, 0")
    vm.wait("w0")
    A("s_waitcnt lgkmcnt(0)\ns_barrier")
    A("ds_read_b64_tr_b16 v[24:25], v18\nds_read_b64_tr_b16 v[26:27], v19")
    FB = 64
    def frags(ks):
        b = FB + (ks % 2)*24
        for mb in range(2):
            A(f"ds_read_b128 {v(b+4*mb,4)}, {v(AA+2*mb+(ks%2))} offset:{(ks//2)*128}"); lg.issue(f"f{ks}")
        for zh in range(2):
            for bi in range(2):
                for h in range(2):
                    A(f"ds_read_b64_tr_b16 {v(b+8+(zh*2+bi)*4+2*h,2)}, {v(16+bi)} offset:{(ks%4)*16384+zh*256+h*8192}"); lg.issue(f"f{ks}")
    lg.issue("xnt"); lg.issue("xnt")
    frags(0)
    lg.wait("xnt")
    A(f"buffer_store_dwordx4 v[24:27], v20, s[24:27], 0 offen sc1"); vm.issue("xnt")
    for ks in range(14):
        if ks+1 < 14: vm.wait(f"w{ks+1}")
        lg.waitall()
        if ks+1 < 14: A("s_barrier")
        if ks+4 < 14: dma(ks+4)
        if ks+1 < 14: frags(ks+1)
        b = FB + (ks % 2)*24
        if ks == 3: arrive(32, "s31", 1); arrive(0, "s30", 1)
        if ks == 12:
            A(f"s_cmp_lg_u32 s3, 0\ns_cbranch_scc1 {name}_np1"); poll([(0, "s30", 0, 7), (32, "s31", 0, 32), (40, None, 0, 28)]); A.label(f"{name}_np1")
        for mb in range(2):
            for bi in range(2):
                A(f"v_mfma_f32_16x16x32_bf16 {v(ACC+16+(mb*2+bi)*4,4)}, {v(b+4*mb,4)}, {v(b+8+(2+bi)*4,4)}, {v(ACC+16+(mb*2+bi)*4,4)}")
                A(f"v_mfma_f32_16x16x32_bf16 {v(ACC+(mb*2+bi)*4,4)}, {v(b+8+bi*4,4)}, {v(b+4*mb,4)}, {v(ACC+(mb*2+bi)*4,4)}")
    stp(2)
    A(f"v_mov_b32 v31, {f32(GC1)}\ns_nop 7")
    Z2 = list(range(ACC+16, ACC+32)); Z1 = list(range(ACC, ACC+16))
    TMP = list(range(64, 80)); P2 = list(range(80, 88)); P1 = list(range(136, 144))
    gelu_block(A, Z2, TMP, 31, P2)
    for i in range(0, 16, 2):
        A(f"v_lshlrev_b32 {v(Z2[i])}, 16, {v(P2[i//2])}\nv_and_b32 {v(Z2[i+1])}, 0xffff0000, {v(P2[i//2])}")
    for mb in range(2):
        for i in range(4):
            a0 = Z2[(mb*2)*4+i]; a1 = Z2[(mb*2+1)*4+i]
            A(f"v_add_f32 {v(96+mb*4+i)}, {v(a0)}, {v(a1)}\nv_mul_f32 {v(104+mb*4+i)}, {v(a0)}, {v(a0)}\nv_fmac_f32 {v(104+mb*4+i)}, {v(a1)}, {v(a1)}")
    for sh in (1, 2, 4, 8):
        for r in range(96, 112):
            A(f"v_add_f32_dpp {v(r)}, {v(r)}, {v(r)} row_ror:{sh} row_mask:0xf bank_mask:0xf")
    A(f"s_lshl_b32 s38, s37, 9\ns_lshl_b32 s39, s36, 8\ns_add_u32 s38, s38, s39\ns_add_u32 s38, s38, {ST}\nv_lshlrev_b32 v6, 5, v4\nv_add_u32 v6, s38, v6")
    A("v_cmp_eq_u32 vcc, 0, v3\ns_and_saveexec_b64 s[40:41], vcc")
    for mb in range(2):
        for i in range(4):
            A(f"ds_write2_b32 v6, {v(96+mb*4+i)}, {v(104+mb*4+i)} offset0:{mb*32+i*2} offset1:{mb*32+i*2+1}")
    A("s_mov_b64 exec, s[40:41]")
    A(f"s_cmp_lg_u32 s3, 0\ns_cbranch_scc1 {name}_np0")
    poll_post()
    A.label(f"{name}_np0")
    A("s_waitcnt lgkmcnt(0)\ns_barrier")
    A(f"s_cmp_lg_u32 s3, 0\ns_cbranch_scc1 {name}_nopub")
    A(f"v_lshlrev_b32 v6, 3, v1\nv_add_u32 v7, {ST}, v6")
    for wn in range(4): A(f"ds_read_b64 {v(96+2*wn,2)}, v7 offset:{wn*512}")
    A(f"s_lshl_b32 s39, s31, 9\ns_add_u32 s38, s99, s39")
    A("s_waitcnt lgkmcnt(0)\nv_pk_add_f32 v[96:97], v[96:97], v[98:99]\nv_pk_add_f32 v[100:101], v[100:101], v[102:103]\nv_pk_add_f32 v[96:97], v[96:97], v[100:101]")
    A("buffer_store_dwordx2 v[96:97], v6, s[24:27], s38 offen sc1")
    A.label(f"{name}_nopub")
    UR = 216; XE = 128
    A(f"s_lshl_b32 s33, s64, 12\ns_add_u32 s68, s10, s33\ns_addc_u32 s69, s11, 0\ns_mov_b32 s70, 4096\ns_mov_b32 s71, 0x20000")
    A(f"s_cmp_eq_u32 s65, 0\ns_cselect_b32 s33, 0, {-(512+32) & 0xffffffff}\nv_lshlrev_b32 v7, 6, v1\nv_add_u32 v7, s33, v7")
    for c in range(7): A(f"v_add_u32 v{10+c}, {16*c}, v7")
    for c in range(7): A(f"buffer_load_dwordx4 {v(UR+4*c,4)}, v{10+c}, s[68:71], 0 offen")
    A("v_lshlrev_b32 v2, 5, v3\nv_lshl_add_u32 v2, v4, 3, v2\ns_lshl_b32 s33, s65, 10\nv_add_u32 v2, s33, v2")
    for t in range(2): A(f"buffer_load_dwordx2 {v(XE+2*t,2)}, v2, s[68:71], 0 offen offset:{512*t}")
    gelu_block(A, Z1, TMP, 31, P1)
    A(f"s_mul_i32 s66, s3, {STG}\nv_lshl_add_u32 v8, v1, 2, s66\nv_mul_u32_u24 v9, {PITCH}, v3\nv_lshl_add_u32 v9, v4, 4, v9\nv_add_u32 v9, s66, v9")
    for r in range(PR, PR+6): A(f"v_lshlrev_b32 v{r}, 16, v{r}")
    z = PR; DT = PR+4
    A(f"v_mul_f32 {v(DT)}, {f32(LOG2E)}, {v(DT)}\nv_exp_f32 {v(DT)}, {v(DT)}\nv_mul_f32 {v(z)}, {f32(LOG2E)}, {v(z)}\nv_exp_f32 {v(z)}, {v(z)}")
    A(f"v_max_f32_e64 v20, |{v(z+2)}|, |{v(z+3)}|")
    bf16r(A, DT, DT); bf16r(A, z, z)
    for sh in (1, 2, 4, 8):
        A(f"s_nop 1\nv_max_f32_dpp v20, v20, v20 row_ror:{sh} row_mask:0xf bank_mask:0xf")
    A(f"s_nop 1\nv_readlane_b32 s34, v20, 0\nv_readlane_b32 s35, v20, 16\nv_readlane_b32 s38, v20, 32\nv_readlane_b32 s39, v20, 48\nv_readfirstlane_b32 s72, {v(DT)}\nv_readfirstlane_b32 s73, {v(PR+5)}")
    A(f"s_max_u32 s34, s34, s35\ns_max_u32 s38, s38, s39\ns_max_u32 s34, s34, s38\ns_max_u32 s34, s34, {f32(1e-30)}\nv_rcp_f32 v21, s34")
    A(f"v_mul_f32 {v(z)}, {v(z)}, {v(DT)}\nv_mul_f32 {v(z+1)}, {v(z+1)}, {v(DT)}")
    A(f"v_mul_f32 {v(z)}, {f32(-LOG2E)}, {v(z)}\nv_mul_f32 {v(z+1)}, {f32(1/(2*math.pi))}, {v(z+1)}")
    A(f"v_mul_f32 {v(z+2)}, {v(z+2)}, v21\nv_mul_f32 {v(z+3)}, {v(z+3)}, v21")
    KD = 160; E1, E8, E128 = 172, 174, 176; G = 180; LO = 196; T0, T1 = 198, 200; CV = 204; FR = 64
    cvn = [0]
    def put(row, X, neg):
        c = CV + cvn[0] % 8; cvn[0] += 1
        return [f"v_cvt_pk_f16_f32 {v(c)}, {v(X)}, {'-' if neg else ''}{v(X+1)}", f"ds_write_b32 v8, {v(c)} offset:{row*PITCH}"]
    for E, m in ((E1, 1.0), (E8, 8.0), (E128, 128.0)):
        A(f"v_mul_f32 v178, {f32(m)}, {v(z)}\nv_mul_f32 v179, {f32(m)}, {v(z+1)}\nv_exp_f32 v178, v178\nv_fract_f32 v179, v179\nv_cos_f32 {v(E)}, v179\nv_sin_f32 {v(E+1)}, v179\ns_nop 0")
        A(f"v_mul_f32 {v(E)}, {v(E)}, v178\nv_mul_f32 {v(E+1)}, {v(E+1)}, v178")
    A(f"v_mov_b32 v212, 0x3c00\nds_write_b32 v8, v212 offset:{41*PITCH}")
    steps_lo = [("L", 42, E8, None)] + [("L", 41+l, LO, (LO, E8 if l == 2 else LO, E8)) for l in range(2, 16)]
    steps_hi = [("H", 0, z+2, None)]
    for b in range(1, 8): steps_hi.append(("H", b, G+2*b, (G+2*b, (z+2) if b == 1 else G+2*(b-1), E1)))
    for b in range(8): steps_hi.append(("H", 8+b, G+2*b, (G+2*b, (z+2) if b == 0 else G+2*b, E128)))
    for a_ in range(2):
        for b in range(4): steps_hi.append(("H", 16+4*a_+b, G+4*b, (G+4*b, G+4*b, E128)))
    for a_ in range(4):
        for b in range(2): steps_hi.append(("H", 24+2*a_+b, G+8*b, (G+8*b, G+8*b, E128)))
    for a_ in range(9): steps_hi.append(("H", 32+a_, G, (G, G, E128)))
    seq = []; il = 0
    for i, sh_ in enumerate(steps_hi):
        seq.append(sh_)
        if (i < 7 and i % 2 == 0) or i >= 24:
            if il < len(steps_lo): seq.append(steps_lo[il]); il += 1
    while il < len(steps_lo): seq.append(steps_lo[il]); il += 1
    pend = []
    SR = 32
    def statloads():
        for c in range(7): A(f"buffer_load_dwordx2 {v(SR+2*c,2)}, v10, s[24:27], s99 offen offset:{c*512} sc1")
    A("v_lshlrev_b32 v10, 3, v1")
    for n_, (kind, row, X, mul) in enumerate(seq):
        if n_ == STI:
            A(f"s_cmp_lg_u32 s3, 0\ns_cbranch_scc1 {name}_nsl"); statloads(); A.label(f"{name}_nsl")
        if mul:
            m = cmul(mul[0], mul[1], mul[2], T0 if kind == "H" else T1)
            A(m[0])
            for l in pend: A(l)
            A(m[1])
        else:
            for l in pend: A(l)
        pend = put(row, X, kind == "L")
    for l in pend: A(l)
    A("s_waitcnt lgkmcnt(0)"); lg.q = []
    for j in range(4):
        A(f"ds_read_b128 {v(FR+j*16+12,4)}, v9 offset:{41*PITCH+j*64}"); lg.issue(f"k{j}")
        for blk in range(3):
            A(f"ds_read_b128 {v(FR+j*16+4*blk,4)}, v9 offset:{blk*16*PITCH+j*64}"); lg.issue(f"k{j}")
    for j in range(4):
        lg.wait(f"k{j}")
        for blk in range(3):
            c = "0" if j == 0 else v(KD+4*blk,4)
            A(f"v_mfma_f32_16x16x32_f16 {v(KD+4*blk,4)}, {v(FR+j*16+4*blk,4)}, {v(FR+j*16+12,4)}, {c}")
    A(f"v_lshl_add_u32 v8, v1, 4, s66\nv_mov_b32 v22, s34\nv_mov_b32 v23, s66\ns_nop 7")
    for i in range(12): A(f"v_mul_f32 {v(KD+i)}, s34, {v(KD+i)}")
    for blk in range(3): A(f"ds_write_b128 v8, {v(KD+4*blk,4)} offset:{blk*1024}")
    A(f"ds_write_b32 v23, v22 offset:3072")
    A(f"s_cmp_lg_u32 s3, 0\ns_cbranch_scc1 {name}_nopoll")
    A("s_mov_b32 s42, 0")
    A.label(f"{name}_sp")
    A(f"s_waitcnt vmcnt(0)\nv_max3_u32 v6, {v(SR)}, {v(SR+1)}, {v(SR+2)}")
    for c in range(3, 13, 2): A(f"v_max3_u32 v6, v6, {v(SR+c)}, {v(SR+c+1)}")
    A(f"v_max_u32 v6, v6, {v(SR+13)}\nv_cmp_eq_u32 vcc, -1, v6")
    A(f"s_add_u32 s42, s42, 1\ns_cmp_gt_u32 s42, 30000\ns_cbranch_scc1 {name}_spd\ns_cmp_eq_u64 vcc, 0\ns_cbranch_scc1 {name}_spd\ns_sleep {SLP}")
    statloads()
    A(f"s_branch {name}_sp")
    A.label(f"{name}_spd")
    A(f"v_pk_add_f32 v[96:97], {v(SR,2)}, {v(SR+2,2)}\nv_mov_b32 v6, v10")
    for c in range(2, 7): A(f"v_pk_add_f32 v[96:97], v[96:97], {v(SR+2*c,2)}")
    A(f"v_mul_f32 v96, {f32(1/896)}, v96\nv_mul_f32 v97, {f32(1/896)}, v97\nv_fma_f32 v97, -v96, v96, v97\nv_max_f32 v97, 0, v97")
    bf16r(A, 97, 97); A(f"v_add_f32 v97, {f32(1e-5)}, v97"); bf16r(A, 97, 97)
    A("v_sqrt_f32 v97, v97\ns_nop 0"); bf16r(A, 97, 97)
    A("v_rcp_f32 v98, v97"); bf16r(A, 96, 96)
    A("v_fma_f32 v99, -v97, v98, 1.0\nv_fma_f32 v97, v99, v98, v98")
    A(f"v_add_u32 v6, {ST2}, v6\nds_write_b64 v6, v[96:97]")
    A.label(f"{name}_nopoll")
    A("s_waitcnt lgkmcnt(0)\ns_barrier")
    stp(3)
    vm.q = []
    A(f"s_lshl_b32 s38, s36, 8\ns_add_u32 s38, s38, {ST2}\nv_lshlrev_b32 v6, 5, v4\nv_add_u32 v6, s38, v6")
    for mb in range(2):
        A(f"ds_read_b128 {v(96+mb*8,4)}, v6 offset:{mb*128}\nds_read_b128 {v(100+mb*8,4)}, v6 offset:{mb*128+16}")
    A("s_waitcnt lgkmcnt(0)")
    for mb in range(2):
        for bi in range(2):
            zz = Z2[(mb*2+bi)*4:(mb*2+bi)*4+4]; p = P2[(mb*2+bi)*2:(mb*2+bi)*2+2]
            for i in range(4): A(f"v_sub_f32 {v(zz[i])}, {v(zz[i])}, {v(96+mb*8+2*i)}")
            for h in range(2): A(f"v_cvt_pk_bf16_f32 {v(p[h])}, {v(zz[2*h])}, {v(zz[2*h+1])}")
            for h in range(2): A(f"v_lshlrev_b32 {v(zz[2*h])}, 16, {v(p[h])}\nv_and_b32 {v(zz[2*h+1])}, 0xffff0000, {v(p[h])}")
            for i in range(4): A(f"v_mul_f32 {v(zz[i])}, {v(zz[i])}, {v(96+mb*8+2*i+1)}")
            for h in range(2): A(f"v_cvt_pk_bf16_f32 {v(64+bi*4+mb*2+h)}, {v(zz[2*h])}, {v(zz[2*h+1])}")
    A("s_nop 1")
    for bi in range(2):
        for h in range(2): A(f"v_permlane32_swap_b32 {v(64+bi*4+h)}, {v(64+bi*4+2+h)}")
    A("s_nop 1")
    for bi in range(2):
        for h in range(2): A(f"v_permlane16_swap_b32 {v(64+bi*4+h)}, {v(64+bi*4+2+h)}")
    A(f"s_lshl_b32 s35, s31, 2\ns_add_u32 s35, s35, s37\ns_lshl_b32 s38, s35, 6\ns_lshl_b32 s39, s30, 1\ns_add_u32 s38, s38, s39\ns_add_u32 s38, s38, s36\ns_lshl_b32 s38, s38, 11\ns_add_u32 s38, s38, {WS_Z2F}")
    A("v_lshlrev_b32 v5, 4, v1\ns_waitcnt vmcnt(0)")
    for bi in range(2):
        A(f"buffer_store_dwordx4 {v(64+bi*4,4)}, v5, s[24:27], s38 offen offset:{bi*1024} sc1"); vm.issue("z2")
    A(f"s_mul_i32 s66, s36, {4*STG}\nv_add_u32 v8, s66, v5\nv_mov_b32 v9, s66")
    for pw in range(4):
        for blk in range(3): A(f"ds_read_b128 {v(32+pw*12+4*blk,4)}, v8 offset:{pw*STG+blk*1024}")
        A(f"ds_read_b32 {v(80+pw)}, v9 offset:{pw*STG+3072}")
    KD = 20
    A("s_waitcnt lgkmcnt(0)\nv_max3_f32 v80, v80, v81, v82\nv_max_f32 v80, v80, v83\nv_rcp_f32 v81, v80")
    for i in range(0, 12, 2):
        A(f"v_pk_add_f32 {v(32+i,2)}, {v(32+i,2)}, {v(44+i,2)}\nv_pk_add_f32 {v(56+i,2)}, {v(56+i,2)}, {v(68+i,2)}")
    for i in range(0, 12, 2): A(f"v_pk_add_f32 {v(32+i,2)}, {v(32+i,2)}, {v(56+i,2)}")
    for i in range(12): A(f"v_mul_f32 {v(KD+i)}, {v(32+i)}, v81")
    A("v_mul_f32 v80, s72, v80\nv_add_f32 v80, v80, v80\ns_nop 0\nv_readfirstlane_b32 s74, v80")
    A(f"v_readlane_b32 s44, {v(KD+4)}, 0\nv_readlane_b32 s45, {v(KD+4)}, 32\nv_readlane_b32 s46, {v(KD+8)}, 0\nv_mov_b32 v9, 0")
    A("s_barrier")
    srd(A, 20, 14, 2048*4096)
    A("v_lshrrev_b32 v6, 3, v1\ns_lshl_b32 s32, s3, 3\nv_add_u32 v6, s32, v6\nv_and_b32 v7, 7, v1\nv_bfe_u32 v8, v6, 1, 3\nv_xor_b32 v8, v8, v7\nv_lshlrev_b32 v6, 12, v6\nv_lshl_add_u32 v18, v8, 4, v6")
    A(f"s_lshl_b32 s67, s30, 18\ns_lshl_b32 s75, s3, 10\ns_add_u32 s75, s75, {RING2}")
    def dma2(stg):
        A(f"s_add_u32 m0, s75, {(stg%NR)*8192}\ns_add_u32 s39, s67, {stg*128}")
        A(f"buffer_load_dwordx4 v18, s[20:23], s39 offen lds"); vm.issue(f"w{stg}")
    for stg in range(NR): dma2(stg)
    U16 = 0; W16 = 4608; W4 = W16+5376; W8 = W4+8256; KA = W8+7296; K16 = KA+1280; K4 = K16+384; K8 = K4+384
    YA = KA+2560; YC = YA+8192; YD = YC+8192; YE = YD+8192
    assert YE+4096 <= CH
    A(f"s_mul_i32 s66, s36, {CH}\nv_add_u32 v8, s66, v5")
    UF = 32
    for i in range(4): A(f"v_mov_b32 {v(88+i)}, 0")
    for i in range(28): A(f"v_lshlrev_b32 {v(UF+2*i)}, 16, {v(UR+i)}\nv_and_b32 {v(UF+2*i+1)}, 0xffff0000, {v(UR+i)}")
    vm.wait("z2"); setflag("s97")
    WR = 144
    A(f"s_mul_i32 s38, s31, {4*28}\ns_mul_i32 s39, s37, 7\ns_add_u32 s38, s38, s39\ns_lshl_b32 s38, s38, 10\ns_add_u32 s38, s38, {WS_WOF}")
    for j in range(4):
        A(f"s_add_u32 s39, s38, {j*28*1024}\ns_add_u32 s33, s38, {j*28*1024+4096}")
        for ks in range(7):
            A(f"buffer_load_dwordx4 {v(WR+ks*16+j*4,4)}, v5, s[24:27], {'s39' if ks<4 else 's33'} offen offset:{(ks%4)*1024}"); vm.issue("W")
    UR = 100
    P = lambda k: v(UF+k)
    def S(dst, k, r): return f"v_sub_f32 {v(dst)}, {P(k+r)}, {P(k-r-1)}"
    def prefix():
        for k in range(5, 52): A(f"v_add_f32 {P(k)}, {P(k-1)}, {P(k)}")
    def kzero(off, n16):
        A(f"v_cmp_gt_u32 vcc, {n16}, v1\ns_and_saveexec_b64 s[40:41], vcc\nds_write_b128 v8, v[88:91] offset:{off}\ns_mov_b64 exec, s[40:41]")
    hi = lambda i: '_d16_hi' if i % 2 else ''
    A(f"s_cmp_eq_u32 s65, 1\ns_cbranch_scc1 {name}_b1\ns_cmp_eq_u32 s65, 2\ns_cbranch_scc1 {name}_b2\ns_cmp_eq_u32 s65, 3\ns_cbranch_scc1 {name}_b3")
    A(f"ds_write_b128 v8, v[88:91] offset:{KA}"); kzero(KA+1024, 16); kzero(U16, 32)
    for i in range(16): A(f"v_cvt_pk_f16_f32 {v(UR+i)}, {v(UF+2*i)}, {v(UF+2*i+1)}")
    A("v_lshl_add_u32 v10, v1, 6, s66")
    for c in range(4): A(f"ds_write_b128 v10, {v(UR+4*c,4)} offset:{U16+512+16*c}")
    A(f"v_writelane_b32 v9, s44, 63\nv_sub_f32 {v(KD+3)}, {v(KD+3)}, v9")
    for i in (0, 2): A(f"v_cvt_pk_f16_f32 {v(KD+i)}, {v(KD+i)}, {v(KD+i+1)}")
    A("v_lshrrev_b32 v10, 1, v4\nv_lshlrev_b32 v10, 7, v10\nv_lshl_add_u32 v10, v3, 3, v10\nv_and_b32 v11, 1, v4\nv_lshl_add_u32 v10, v11, 2, v10")
    A(f"v_sub_u32 v10, 285, v10\nv_lshl_add_u32 v10, v10, 1, s66")
    for cp in range(2):
        for i in range(4): A(f"ds_write_b16{hi(i)} v10, {v(KD+(i//2)*2)} offset:{KA+cp*642+(3-i)*2}")
    A(f"s_branch {name}_bd")
    A.label(f"{name}_b1")
    kzero(K16, 24); prefix()
    A("v_lshl_add_u32 v10, v1, 3, s66\nv_cmp_gt_u32 vcc, 40, v1\ns_and_saveexec_b64 s[40:41], vcc")
    for phi in range(16):
        o = 100 + (phi % 2)*6
        for lam in range(2):
            k = 16+16*lam+phi
            A(S(o+2+2*lam, k-8, 3)); A(S(o+3+2*lam, k, 4))
        for lam in range(2): A(f"v_cvt_pk_f16_f32 {v(o+lam)}, {v(o+2+2*lam)}, {v(o+3+2*lam)}")
        A(f"ds_write_b64 v10, {v(o,2)} offset:{W16+phi*336}")
    A("s_mov_b64 exec, s[40:41]")
    for i in (8, 10): A(f"v_cvt_pk_f16_f32 {v(KD+i)}, {v(KD+i)}, {v(KD+i+1)}")
    A(f"v_lshl_add_u32 v10, v4, 6, v3\nv_sub_u32 v10, {111+128}, v10\nv_lshl_add_u32 v10, v10, 1, s66")
    A("v_cmp_gt_u32 vcc, 33, v1\ns_and_saveexec_b64 s[40:41], vcc")
    A(f"ds_write_b16 v10, {v(KD+8)} offset:{K16-256+96}\ns_mov_b32 exec_hi, 0")
    for i in range(1, 4): A(f"ds_write_b16{hi(i)} v10, {v(KD+8+(i//2)*2)} offset:{K16-256+(3-i)*32}")
    A(f"s_mov_b64 exec, s[40:41]\ns_branch {name}_bd")
    A.label(f"{name}_b2")
    kzero(K4, 24)
    A("v_lshl_add_u32 v10, v1, 5, s66")
    for phi in range(4):
        o = 100 + (phi % 2)*8
        for lam in range(8):
            k = 16+4*lam+phi
            A(f"v_add_f32 {v(116+lam)}, {P(k-1)}, {P(k)}")
        for lam in range(8):
            k = 16+4*lam+phi
            A(f"v_add_f32 {v(116+lam)}, {v(116+lam)}, {P(k+1)}")
        for lam in range(8):
            k = 16+4*lam+phi
            A(f"v_cvt_pk_f16_f32 {v(o+lam)}, {P(k-2)}, {v(116+lam)}")
        A(f"ds_write_b128 v10, {v(o,4)} offset:{W4+phi*2064}\nds_write_b128 v10, {v(o+4,4)} offset:{W4+phi*2064+16}")
    A(f"v_writelane_b32 v9, s45, 31\nv_sub_f32 {v(KD+7)}, {v(KD+7)}, v9")
    for i in (4, 6): A(f"v_cvt_pk_f16_f32 {v(KD+i)}, {v(KD+i)}, {v(KD+i+1)}")
    A("v_and_b32 v11, 1, v4\nv_lshlrev_b32 v11, 6, v11\nv_lshl_add_u32 v10, v3, 2, v11\nv_sub_u32 v10, 156, v10\nv_lshl_add_u32 v10, v10, 1, s66\ns_mov_b32 exec_hi, 0")
    for i in range(4): A(f"ds_write_b16{hi(i)} v10, {v(KD+4+(i//2)*2)} offset:{K4+(3-i)*2}")
    A(f"s_mov_b32 exec_hi, -1\ns_branch {name}_bd")
    A.label(f"{name}_b3")
    kzero(K8, 24); prefix()
    A("v_cmp_gt_u32 vcc, 56, v1\ns_and_saveexec_b64 s[40:41], vcc")
    for phi in range(8):
        o = 100 + (phi % 2)*12
        for lam in range(4):
            k = 16+8*lam+phi
            A(S(o+4+lam, k-4, 1)); A(S(o+8+lam, k, 2))
        for lam in range(4): A(f"v_cvt_pk_f16_f32 {v(o+lam)}, {v(o+4+lam)}, {v(o+8+lam)}")
        A(f"ds_write_b128 v8, {v(o,4)} offset:{W8+phi*912}")
    A("s_mov_b64 exec, s[40:41]")
    A(f"v_writelane_b32 v9, s46, 63\nv_sub_f32 {v(KD+7)}, {v(KD+7)}, v9")
    for i in (4, 6): A(f"v_cvt_pk_f16_f32 {v(KD+i)}, {v(KD+i)}, {v(KD+i+1)}")
    A("v_and_b32 v11, 1, v4\nv_lshlrev_b32 v11, 6, v11\nv_lshl_add_u32 v11, v3, 1, v11\nv_sub_u32 v11, 126, v11\nv_lshl_add_u32 v11, v11, 1, s66\ns_mov_b32 exec_lo, 0")
    for i in range(4): A(f"ds_write_b16{hi(i)} v11, {v(KD+4+(i//2)*2)} offset:{K8+66-64*(i//2)-2*(i%2)}")
    A("s_mov_b32 exec_lo, -1")
    A.label(f"{name}_bd")
    A("s_waitcnt lgkmcnt(0)\ns_barrier")
    stp(4)
    def mf_loop(jobs, RING, nr):
        lg.q = []; D = nr-1
        for i in range(min(D, len(jobs))):
            A(f"ds_read_b128 {v(RING+4*(i%nr),4)}, {v(jobs[i][0])} offset:{jobs[i][1]}"); lg.issue(f"j{i}")
        for i, (ar, off, fn) in enumerate(jobs):
            if i+D < len(jobs):
                A(f"ds_read_b128 {v(RING+4*((i+D)%nr),4)}, {v(jobs[i+D][0])} offset:{jobs[i+D][1]}"); lg.issue(f"j{i+D}")
            lg.wait(f"j{i}")
            A(fn(RING+4*(i%nr)))
    def tfrags(dst, areg, off0, n, step):
        for d in range(n):
            o = (off0 - step*d)//4
            A(f"ds_read2_b32 {v(dst+4*d,2)}, {v(areg)} offset0:{o} offset1:{o+1}\nds_read2_b32 {v(dst+4*d+2,2)}, {v(areg)} offset0:{o+2} offset1:{o+3}")
    def mfj(ac, first, aop, bop):
        return f"v_mfma_f32_16x16x32_f16 {v(ac,4)}, {aop}, {bop}, {'0' if first else v(ac,4)}"
    RING = 96
    A(f"v_lshlrev_b32 v11, 2, v4\nv_sub_u32 v11, v11, v3\nv_lshlrev_b32 v11, 2, v11\nv_add_u32 v11, {K16+60}, v11\nv_add_u32 v11, s66, v11")
    A("v_lshlrev_b32 v12, 6, v3\nv_lshl_add_u32 v12, v4, 4, v12\nv_add_u32 v12, s66, v12")
    A("v_mul_u32_u24 v13, 336, v3\nv_lshl_add_u32 v13, v4, 4, v13\nv_add_u32 v13, s66, v13")
    A(f"s_cmp_eq_u32 s65, 2\ns_cbranch_scc1 {name}_c2\ns_cmp_eq_u32 s65, 3\ns_cbranch_scc1 {name}_c3")
    TD = 20; TT = 56; T16 = 60; AC = 64
    A("v_and_b32 v10, 1, v3\nv_mul_u32_u24 v10, 642, v10\nv_lshlrev_b32 v14, 3, v4\nv_sub_u32 v14, v14, v3\nv_lshl_add_u32 v10, v14, 1, v10")
    A(f"v_add_u32 v10, {KA+32}, v10\nv_add_u32 v10, s66, v10")
    tfrags(TD, 10, 512, 9, 64); tfrags(T16, 11, 256, 1, 64)
    A("v_mov_b32 v10, s46\nv_cvt_pk_f16_f32 v10, v10, v10\nv_sub_u32 v14, 5, v14\nv_and_b32 v15, 0xffff, v10\nv_and_b32 v16, 0xffff0000, v10")
    for p in range(8): A(f"v_cmp_eq_u32 {s(80+2*p,2)}, {p}, v14")
    for p in range(4): A(f"v_cndmask_b32 {v(TT+p)}, 0, v15, {s(80+4*p,2)}")
    for p in range(4): A(f"v_cndmask_b32 {v(TT+p)}, {v(TT+p)}, v16, {s(82+4*p,2)}")
    A("v_lshlrev_b32 v10, 5, v3\nv_lshl_add_u32 v10, v4, 4, v10\nv_add_u32 v10, s66, v10\ns_waitcnt lgkmcnt(0)")
    A(f"s_cmp_eq_u32 s65, 1\ns_cbranch_scc1 {name}_c1")
    for role in range(2):
        if role == 1: A.label(f"{name}_c1")
        jobs = []
        for nb in range(4*role, 4*role+4):
            ac = AC+4*(nb % 4)
            for d in range(9):
                dp = 1+2*d
                if nb == 0 and dp > 15: continue
                jobs.append((10, U16+512+512*nb-32*dp, lambda f, ac=ac, d=d: mfj(ac, d == 0, v(TD+4*d,4), v(f,4))))
            if nb >= 3: jobs.append((10, U16+512+512*nb-2048, lambda f, ac=ac: mfj(ac, False, v(TT,4), v(f,4))))
            if nb == 3: jobs.append((13, W16, lambda f, ac=ac: mfj(ac, False, v(f,4), v(T16,4))))
        mf_loop(jobs, RING, 8)
        A("s_nop 7")
        for t in range(4): A(f"ds_write_b128 v12, {v(AC+4*t,4)} offset:{YA+4096*role+1024*t}")
        A(f"s_branch {name}_cd")
    A.label(f"{name}_c2")
    T4 = 20; AC = 40
    tfrags(T4, 11, 256+384, 5, 64)
    A("v_and_b32 v10, 3, v3\nv_mul_u32_u24 v10, 2064, v10\nv_lshrrev_b32 v14, 2, v3\nv_lshl_add_u32 v10, v14, 6, v10\nv_lshl_add_u32 v10, v4, 4, v10\nv_add_u32 v10, s66, v10\ns_waitcnt lgkmcnt(0)")
    jobs = []
    for t in range(8):
        for d in range(5):
            if 4*t-d >= 0: jobs.append((10, W4+64*(4*t-d), lambda f, ac=AC+4*t, d=d: mfj(ac, d == 0, v(f,4), v(T4+4*d,4))))
    mf_loop(jobs, RING, 8)
    A("s_nop 7")
    for t in range(8): A(f"ds_write_b128 v8, {v(AC+4*t,4)} offset:{YC+1024*t}")
    A(f"s_branch {name}_cd")
    A.label(f"{name}_c3")
    T8 = 20; T16 = 72; AC = 40
    A("v_add_u32 v14, 768, v11")
    tfrags(T8, 14, 256, 5, 64); tfrags(T16, 11, 256, 5, 64)
    A("v_and_b32 v10, 7, v3\nv_mul_u32_u24 v10, 912, v10\nv_lshrrev_b32 v14, 3, v3\nv_lshl_add_u32 v10, v14, 6, v10\nv_lshl_add_u32 v10, v4, 4, v10\nv_add_u32 v10, s66, v10")
    A("v_lshrrev_b32 v14, 1, v4\nv_lshlrev_b32 v14, 9, v14\nv_lshl_add_u32 v14, v3, 5, v14\nv_and_b32 v15, 1, v4\nv_lshl_add_u32 v14, v15, 4, v14\nv_add_u32 v14, s66, v14\ns_waitcnt lgkmcnt(0)")
    jobs = []
    for t in range(1, 8):
        for d in range(5):
            if 2*t-2-d >= 0: jobs.append((10, W8+64*(2*t-2-d), lambda f, ac=AC+4*t, d=d: mfj(ac, d == 0, v(f,4), v(T8+4*d,4))))
    for nb in range(4, 8):
        for d in range(5):
            if nb-3-d >= 0: jobs.append((13, W16+64*(nb-3-d), lambda f, ac=20+4*(nb-4), d=d: mfj(ac, d == 0, v(f,4), v(T16+4*d,4))))
    mf_loop(jobs, RING, 8)
    for t in range(1, 8): A(f"ds_write_b128 v14, {v(AC+4*t,4)} offset:{YD+1024*t}")
    A("s_nop 3")
    for t in range(4): A(f"ds_write_b128 v12, {v(20+4*t,4)} offset:{YE+1024*t}")
    for i in range(4): A(f"v_mov_b32 {v(AC+i)}, 0")
    A(f"ds_write_b128 v14, {v(AC,4)} offset:{YD}")
    A.label(f"{name}_cd")
    A("s_lshl_b32 s38, s30, 2\ns_sub_u32 s38, s97, s38")
    pollflags(32)
    ACC = 20; FB = 52; ZB = 84
    assert ZB+NR*8 <= 132
    vm.q = []
    A(f"s_lshl_b32 s34, s35, 17\ns_lshl_b32 s39, s36, 11\ns_add_u32 s34, s34, s39\ns_add_u32 s34, s34, {WS_Z2F}")
    def zl(stg):
        A(f"s_add_u32 s38, s34, {stg*4096}")
        for bi in range(2):
            A(f"buffer_load_dwordx4 {v(ZB+(stg%NR)*8+4*bi,4)}, v5, s[24:27], s38 offen offset:{bi*1024}"); vm.issue(f"z{stg}")
    A("s_waitcnt lgkmcnt(0)")
    for stg in range(NR-1): zl(stg)
    A("s_barrier")
    stp(5)
    A("s_lshl_b32 s33, s65, 11\nv_add_u32 v12, s33, v12")
    for t in range(2):
        for k, Y in enumerate((YA, YC, YD)): A(f"ds_read_b128 {v(20+(t*4+k)*4,4)}, v12 offset:{Y+1024*t}")
    A(f"s_cmp_lt_u32 s65, 2\ns_cbranch_scc1 {name}_noe")
    for t in range(2): A(f"ds_read_b128 {v(20+(t*4+3)*4,4)}, v12 offset:{YE-4096+1024*t}")
    A("s_waitcnt lgkmcnt(0)")
    for t in range(2):
        for h in range(2): A(f"v_pk_add_f32 {v(20+t*16+2*h,2)}, {v(20+t*16+2*h,2)}, {v(20+t*16+12+2*h,2)}")
    A.label(f"{name}_noe")
    for i in range(4): A(f"v_mov_b32 {v(52+i)}, {v(XE+i)}")
    zl(NR-1)
    A(f"s_lshl_b32 s33, s64, 12\ns_add_u32 s33, s33, {WS_AT}\ns_add_u32 s68, s10, s33\ns_addc_u32 s69, s11, 0\ns_waitcnt lgkmcnt(0)")
    for t in range(2):
        for h in range(2):
            y = 20+t*16+2*h; x = 52+t*2+h; tt = 56+4*(t*2+h)
            A(f"v_pk_add_f32 {v(y+4,2)}, {v(y+4,2)}, {v(y+8,2)}\nv_pk_add_f32 {v(y,2)}, {v(y,2)}, {v(y+4,2)}")
            A(f"v_mul_f32 {v(y)}, s74, {v(y)}\nv_mul_f32 {v(y+1)}, s74, {v(y+1)}")
            A(f"v_lshlrev_b32 {v(tt)}, 16, {v(x)}\nv_and_b32 {v(tt+1)}, 0xffff0000, {v(x)}\nv_mul_f32 {v(tt)}, s73, {v(tt)}\nv_mul_f32 {v(tt+1)}, s73, {v(tt+1)}")
            A(f"v_cvt_pk_bf16_f32 {v(x)}, {v(tt)}, {v(tt+1)}\nv_cvt_pk_bf16_f32 {v(tt+2)}, {v(y)}, {v(y+1)}")
            A(f"v_lshlrev_b32 {v(tt)}, 16, {v(x)}\nv_and_b32 {v(tt+1)}, 0xffff0000, {v(x)}\nv_lshlrev_b32 {v(y)}, 16, {v(tt+2)}\nv_and_b32 {v(y+1)}, 0xffff0000, {v(tt+2)}")
            A(f"v_pk_add_f32 {v(tt,2)}, {v(tt,2)}, {v(y,2)}\nv_cvt_pk_bf16_f32 {v(12+t*2+h)}, {v(tt)}, {v(tt+1)}")
    for t in range(2): A(f"buffer_store_dwordx2 {v(12+2*t,2)}, v2, s[68:71], 0 offen offset:{512*t} sc1"); vm.issue("at")
    A("s_lshl_b32 s38, s30, 7\ns_lshl_b32 s39, s36, 6\ns_add_u32 s38, s38, s39\nv_lshlrev_b32 v6, 1, v3\nv_add_u32 v6, s38, v6")
    for t in range(2): A(f"global_load_ushort {v(16+t)}, v6, s[60:61] offset:{32*t}"); vm.issue("at")
    A(f"v_lshrrev_b32 v6, 1, v3\nv_xor_b32 v6, v6, v4\ns_lshl_b32 s38, s36, 2\nv_xor_b32 v6, s38, v6\nv_lshlrev_b32 v7, 7, v3\nv_lshl_add_u32 v19, v6, 4, v7\nv_add_u32 v19, {RING2}, v19")
    lg.q = []
    def frags2(stg):
        b = FB + (stg % 2)*16
        for tb in range(4):
            A(f"ds_read_b128 {v(b+tb*4,4)}, v19 offset:{(stg%NR)*8192+tb*2048}"); lg.issue(f"f{stg}")
    frags2(0)
    for stg in range(32):
        if stg+1 >= NR and stg+1 < 32: vm.wait(f"w{stg+1}")
        vm.wait(f"z{stg}")
        lg.waitall()
        if stg+1 < 32: A("s_barrier")
        if stg+NR < 32: dma2(stg+NR)
        if stg+1 < 32: frags2(stg+1)
        if stg == NR: setflag("s98")
        b = FB + (stg % 2)*16; zb = ZB + (stg % NR)*8
        for tb in range(4):
            for bi in range(2):
                ac = v(ACC+(tb*2+bi)*4,4)
                A(f"v_mfma_f32_16x16x32_bf16 {ac}, {v(zb+bi*4,4)}, {v(b+tb*4,4)}, {'0' if stg == 0 else ac}")
        if stg+NR < 32: zl(stg+NR)
    stp(6)
    def ATDMA():
        A(f"v_lshrrev_b32 v6, 3, v1\nv_and_b32 v7, 7, v1\nv_lshlrev_b32 v6, 12, v6\nv_lshl_add_u32 v6, v7, 4, v6")
        A(f"s_lshl_b32 s38, s31, 6\ns_lshl_b32 s33, s3, 3\ns_add_u32 s38, s38, s33\ns_lshl_b32 s38, s38, 12\ns_lshl_b32 s33, s30, 7\ns_add_u32 s38, s38, s33\ns_add_u32 s38, s38, {WS_AT}\ns_lshl_b32 m0, s3, 10\ns_nop 0")
        A("buffer_load_dwordx4 v6, s[24:27], s38 offen lds")
    A(f"s_lshl_b32 s38, s3, 12\nv_add_u32 v6, s38, v5\ns_xor_b32 s38, s3, 4\ns_lshl_b32 s38, s38, 12\nv_add_u32 v7, s38, v5")
    A(f"v_lshlrev_b32 v16, 16, v16\nv_lshlrev_b32 v17, 16, v17\ns_nop 4\ns_cmp_eq_u32 s36, 0\ns_cbranch_scc1 {name}_x0")
    for i in range(4): A(f"ds_write_b128 v6, {v(ACC+4*i,4)} offset:{1024*i}")
    for i in range(16): A(f"v_mov_b32 {v(ACC+i)}, {v(ACC+16+i)}")
    A(f"s_branch {name}_x1")
    A.label(f"{name}_x0")
    for i in range(4): A(f"ds_write_b128 v6, {v(ACC+16+4*i,4)} offset:{1024*i}")
    A.label(f"{name}_x1")
    A("s_waitcnt lgkmcnt(0)\ns_barrier")
    for i in range(4): A(f"ds_read_b128 {v(ACC+16+4*i,4)}, v7 offset:{1024*i}")
    A(f"s_lshl_b32 s39, s30, 2\ns_lshl_b32 s38, s36, 1\ns_add_u32 s39, s39, s38\ns_mul_i32 s39, s39, 28\ns_add_u32 s38, s39, s35\ns_lshl_b32 s38, s38, 10\ns_add_u32 s38, s38, {WS_HF}\ns_add_u32 s33, s38, {28*1024}")
    A("s_waitcnt lgkmcnt(0)")
    for i in range(8): A(f"v_pk_add_f32 {v(ACC+2*i,2)}, {v(ACC+2*i,2)}, {v(ACC+16+2*i,2)}")
    for tb in range(2):
        for bi in range(2):
            ac = ACC+(tb*2+bi)*4; zz = P1[(tb*2+bi)*2]; t = FB+(tb*2+bi)*6
            for h in range(2): A(f"v_cvt_pk_bf16_f32 {v(t+h)}, {v(ac+2*h)}, {v(ac+2*h+1)}")
            for h in range(2): A(f"v_lshlrev_b32 {v(ac+2*h)}, 16, {v(t+h)}\nv_and_b32 {v(ac+2*h+1)}, 0xffff0000, {v(t+h)}")
            for i in range(4): A(f"v_add_f32 {v(ac+i)}, {v(ac+i)}, {v(16+tb)}")
            for h in range(2): A(f"v_cvt_pk_bf16_f32 {v(t+h)}, {v(ac+2*h)}, {v(ac+2*h+1)}")
            for h in range(2): A(f"v_lshlrev_b32 {v(ac+2*h)}, 16, {v(t+h)}\nv_and_b32 {v(ac+2*h+1)}, 0xffff0000, {v(t+h)}")
            for h in range(2): A(f"v_lshlrev_b32 {v(t+2+2*h)}, 16, {v(zz+h)}\nv_and_b32 {v(t+3+2*h)}, 0xffff0000, {v(zz+h)}")
            for i in range(4): A(f"v_mul_f32 {v(ac+i)}, {v(ac+i)}, {v(t+2+i)}")
            for h in range(2): A(f"v_cvt_pk_bf16_f32 {v(zz+h)}, {v(ac+2*h)}, {v(ac+2*h+1)}")
        A(f"buffer_store_dwordx4 {v(P1[tb*4],4)}, v5, s[24:27], {'s33' if tb else 's38'} offen sc1")
    A(f"s_lshr_b32 s38, s37, 1\ns_lshl_b32 s33, s36, 1\ns_add_u32 s32, s33, s38\ns_lshl_b32 s38, s30, 2\ns_add_u32 s38, s38, s32\ns_mul_i32 s67, s38, {16*896}\ns_lshl_b32 s38, s31, 7\ns_add_u32 s67, s67, s38\ns_and_b32 s38, s37, 1\ns_lshl_b32 s38, s38, 4\ns_add_u32 s67, s67, s38")
    A("v_mul_u32_u24 v18, 896, v3\nv_lshl_add_u32 v18, v4, 5, v18")
    A("s_waitcnt vmcnt(0)")
    setflag("s96")
    A("buffer_load_dwordx4 v[12:15], v18, s[16:19], s67 offen")
    A(f"s_lshl_b32 s38, s31, 10\ns_lshr_b32 s33, s30, 3\ns_lshl_b32 s33, s33, 8\ns_add_u32 s38, s38, s33\ns_lshl_b32 s33, s3, 5\ns_add_u32 s38, s38, s33\ns_add_u32 s38, s38, {WS_FL+16384}")
    pollflags(8)
    A("s_barrier")
    ATDMA()
    A(f"s_lshl_b32 s38, s30, 8\ns_mul_i32 s33, s37, 56\ns_add_u32 s38, s38, s33\ns_lshl_b32 s33, s36, 2\ns_add_u32 s38, s38, s33\ns_add_u32 s38, s38, {WS_FL}")
    pollflags(7, 8)
    stp(7)
    vm.q = []
    HR = 52; ACC = 20; RED = 8192
    A(f"s_mul_i32 s38, s37, 7\ns_add_u32 s38, s38, s39\ns_lshl_b32 s38, s38, 10\ns_add_u32 s38, s38, {WS_HF}")
    A(f"s_add_u32 s33, s38, 4096\ns_add_u32 s34, s38, {28*1024}\ns_add_u32 s35, s38, {28*1024+4096}")
    for ks in range(7):
        for tb in range(2):
            sr = (('s38', 's33'), ('s34', 's35'))[tb][ks >= 4]
            A(f"buffer_load_dwordx4 {v(HR+ks*8+tb*4,4)}, v5, s[24:27], {sr} offen offset:{(ks%4)*1024}"); vm.issue(f"k{ks}")
    A("v_bfe_u32 v6, v1, 2, 2\nv_lshl_add_u32 v6, v4, 4, v6\nv_lshlrev_b32 v6, 7, v6\nv_and_b32 v7, 3, v1\nv_lshl_add_u32 v6, v7, 3, v6\ns_lshl_b32 s38, s32, 5\ns_and_b32 s33, s37, 1\ns_lshl_b32 s33, s33, 10\ns_add_u32 s38, s38, s33\nv_add_u32 v6, s38, v6")
    srd(A, 20, 62, 2048*896)
    for ks in range(7):
        vm.wait(f"k{ks}")
        for tb in range(2):
            for j in range(4):
                ac = v(ACC+(tb*4+j)*4,4)
                A(f"v_mfma_f32_16x16x32_bf16 {ac}, {v(WR+ks*16+j*4,4)}, {v(HR+ks*8+tb*4,4)}, {'0' if ks == 0 else ac}")
    A(f"s_lshl_b32 s38, s3, 13\ns_add_u32 s38, s38, {RED}\nv_add_u32 v7, s38, v5\ns_nop 7")
    for i in range(8): A(f"ds_write_b128 v7, {v(ACC+4*i,4)} offset:{i*1024}")
    A(f"s_lshl_b32 s38, s36, 15\ns_lshl_b32 s33, s37, 11\ns_add_u32 s38, s38, s33\ns_add_u32 s38, s38, {RED}\nv_add_u32 v7, s38, v5")
    A("s_waitcnt vmcnt(0) lgkmcnt(0)\ns_barrier")
    for kq in range(4):
        for jj in range(2): A(f"ds_read_b128 {v(52+kq*8+jj*4,4)}, v7 offset:{kq*8192+jj*1024}")
    for jj in range(2): A(f"ds_read_b64_tr_b16 {v(84+2*jj,2)}, v6 offset:{jj*512}")
    for i in range(4): A(f"v_lshlrev_b32 {v(20+2*i)}, 16, {v(12+i)}\nv_and_b32 {v(21+2*i)}, 0xffff0000, {v(12+i)}")
    A("s_waitcnt lgkmcnt(0)")
    for i in range(4):
        A(f"v_lshlrev_b32 {v(28+2*i)}, 16, {v(84+i)}\nv_and_b32 {v(29+2*i)}, 0xffff0000, {v(84+i)}\nv_pk_add_f32 {v(20+2*i,2)}, {v(20+2*i,2)}, {v(28+2*i,2)}")
        A(f"v_cvt_pk_bf16_f32 {v(12+i)}, {v(20+2*i)}, {v(21+2*i)}\nv_lshlrev_b32 {v(20+2*i)}, 16, {v(12+i)}\nv_and_b32 {v(21+2*i)}, 0xffff0000, {v(12+i)}")
        A(f"v_pk_add_f32 {v(52+2*i,2)}, {v(52+2*i,2)}, {v(60+2*i,2)}\nv_pk_add_f32 {v(68+2*i,2)}, {v(68+2*i,2)}, {v(76+2*i,2)}\nv_pk_add_f32 {v(52+2*i,2)}, {v(52+2*i,2)}, {v(68+2*i,2)}")
        A(f"v_cvt_pk_bf16_f32 {v(12+i)}, {v(52+2*i)}, {v(53+2*i)}\nv_lshlrev_b32 {v(52+2*i)}, 16, {v(12+i)}\nv_and_b32 {v(53+2*i)}, 0xffff0000, {v(12+i)}")
        A(f"v_pk_add_f32 {v(52+2*i,2)}, {v(52+2*i,2)}, {v(20+2*i,2)}\nv_cvt_pk_bf16_f32 {v(12+i)}, {v(52+2*i)}, {v(53+2*i)}")
    A("buffer_store_dwordx4 v[12:15], v18, s[20:23], s67 offen")
    if STAMPS: A("s_waitcnt vmcnt(0)"); stp(1)
    A("s_endpgm")
    A.label(f"{name}_prep")
    srd(A, 16, 12, 896*896)
    srd(A, 24, 10, WS_END)
    srd(A, 20, 14, 2048*4096)
    A(f"s_sub_u32 s30, s2, {NG}\ns_mul_i32 s31, s30, {32*896}\nv_lshlrev_b32 v3, 4, v0")
    A(f"s_cmp_ge_u32 s30, 28\ns_cbranch_scc1 {name}_pf")
    for i in range(4):
        if i == 3: A("v_cmp_gt_u32 vcc, 256, v0\ns_and_saveexec_b64 s[40:41], vcc")
        A(f"s_add_u32 s32, s31, {i*8192}\nbuffer_load_dwordx4 {v(8+4*i,4)}, v3, s[16:19], s32 offen")
    A("s_waitcnt vmcnt(0)\nds_write_b128 v3, v[20:23] offset:24576\ns_mov_b64 exec, s[40:41]")
    for i in range(3): A(f"ds_write_b128 v3, {v(8+4*i,4)} offset:{i*8192}")
    A("s_waitcnt lgkmcnt(0)\ns_barrier")
    A("v_lshrrev_b32 v4, 2, v1\nv_mul_u32_u24 v4, 896, v4\nv_and_b32 v5, 3, v1\nv_lshl_add_u32 v4, v5, 5, v4\ns_lshr_b32 s32, s3, 2\ns_lshl_b32 s32, s32, 7\ns_and_b32 s33, s3, 3\ns_lshl_b32 s33, s33, 3\ns_add_u32 s32, s32, s33\nv_add_u32 v4, s32, v4")
    A(f"v_lshlrev_b32 v5, 4, v1\ns_mul_i32 s33, s3, {28*1024}\ns_lshl_b32 s34, s30, 10\ns_add_u32 s33, s33, s34\ns_add_u32 s33, s33, {WS_WOF}")
    for i in range(4):
        if i == 3: A(f"s_cmp_ge_u32 s3, 4\ns_cbranch_scc1 {name}_pf")
        A(f"ds_read_b64_tr_b16 {v(8+4*i,2)}, v4 offset:{i*256}\nds_read_b64_tr_b16 {v(10+4*i,2)}, v4 offset:{i*256+16*896}")
        A(f"s_add_u32 s34, s33, {i*8*28*1024}\ns_waitcnt lgkmcnt(0)\nbuffer_store_dwordx4 {v(8+4*i,4)}, v5, s[24:27], s34 offen sc1")
    A.label(f"{name}_pf")
    A(f"s_cmp_ge_u32 s30, 28\ns_cbranch_scc1 {name}_pf2")
    A("s_waitcnt vmcnt(0)\ns_barrier\ns_mov_b32 s33, 0")
    arrive(40, "s33", 1)
    A.label(f"{name}_pf2")
    PFS = int(os.environ.get("PFS", "100"))
    if PFS: A(f"s_sleep {PFS}")
    A("s_and_b32 s32, s30, 7\ns_lshr_b32 s32, s32, 1\ns_lshl_b32 s32, s32, 2\ns_lshr_b32 s33, s30, 3\ns_add_u32 s32, s32, s33\ns_lshl_b32 s32, s32, 19")
    for i in range(64):
        if i >= 48: A("s_waitcnt vmcnt(47)")
        A(f"buffer_load_dwordx4 {v(24+4*(i%48),4)}, v3, s[20:23], s32 offen\ns_add_u32 s32, s32, 8192")
    A("s_waitcnt vmcnt(0)")
    stp(1)
    A.label(f"{name}_end")
    A.end_kernel(name, 256, sgpr=100)
    A.launch(name, NG+NAUX, 512, LDS)
```

```python
from gen import *
from k1 import bf16r, gelu_block, GC0, GC1, LOG2E
from ssm import cmul, PITCH
import math, os
STI = int(os.environ.get("STI", "30"))
NR = int(os.environ.get("NR", "12"))
ZD = int(os.environ.get("ZD", "8"))
PRE = int(os.environ.get("PRE", "16"))
def gen_kf(A, name, kidx, STAMPS=False):
    NG = 224; NAUX = 32
    R1 = int(os.environ.get("R1", "6"))
    XN = R1*16384
    STG = 57*PITCH
    ST = max(8*STG, XN+57344); ST2 = ST + 2048
    CH = 29184
    RING2 = 2*CH
    LDS = max(RING2 + NR*8192, 8192+7*16384, ST2+512)
    assert LDS <= 163840
    SS = os.environ.get("SS", "m")
    def stp(slot, grp="m"):
        if STAMPS and (grp == SS or slot < 2): stamp(A, kidx, slot, 10, 76, 132)
    def check(reg, reload, want_nonzero=True, cmpv=None):
        L = A.newlabel("ck"); D = A.newlabel("ckd")
        A("s_mov_b32 s42, 0")
        A.label(L)
        A(f"v_cmp_eq_u32 vcc, 0, v{reg}" if cmpv is None else f"v_cmp_ne_u32 vcc, {cmpv}, v{reg}")
        A(f"s_add_u32 s42, s42, 1\ns_cmp_gt_u32 s42, 30000\ns_cbranch_scc1 {D}")
        A(f"s_cmp_eq_u64 vcc, 0\ns_cbranch_scc1 {D}\ns_sleep 2\n{reload}\ns_waitcnt vmcnt(0)\ns_branch {L}")
        A.label(D)
    WS_FL = WS_STAT + 262144
    SLP = int(os.environ.get("SLP", "2"))
    def setflag(sreg):
        A(f"v_mov_b32 v6, {sreg}\nv_mov_b32 v7, 1\ns_mov_b64 exec, 1\nbuffer_store_dword v7, v6, s[24:27], 0 offen sc1\ns_mov_b64 exec, -1")
    def pollflags(n, stride=4):
        L = A.newlabel("pf"); D = A.newlabel("pfd")
        A(f"v_mul_u32_u24 v6, {stride}, v1\ns_mov_b32 s42, 0\ns_mov_b32 exec_hi, {0 if n < 64 else -1}\ns_mov_b32 exec_lo, {hex((1<<min(n,32))-1)}")
        A.label(L)
        A("buffer_load_dword v7, v6, s[24:27], s38 offen sc1\ns_waitcnt vmcnt(0)\nv_cmp_eq_u32 vcc, 0, v7")
        A(f"s_add_u32 s42, s42, 1\ns_cmp_gt_u32 s42, 30000\ns_cbranch_scc1 {D}")
        A(f"s_cmp_eq_u64 vcc, 0\ns_cbranch_scc1 {D}\ns_sleep {SLP}\ns_branch {L}")
        A.label(D)
        A("s_mov_b64 exec, -1")
    A.begin_kernel(name)
    A(f"s_cmp_ge_u32 s2, {NG+NAUX}\ns_cbranch_scc1 {name}_end")
    A("s_load_dwordx2 s[4:5], s[0:1], 0\ns_load_dwordx2 s[6:7], s[0:1], 64\ns_load_dwordx4 s[8:11], s[0:1], 104")
    A("s_load_dwordx2 s[12:13], s[0:1], 88\ns_load_dwordx2 s[14:15], s[0:1], 72")
    A("s_load_dwordx8 s[48:55], s[0:1], 8\ns_load_dwordx4 s[56:59], s[0:1], 40\ns_load_dwordx2 s[60:61], s[0:1], 80\ns_load_dwordx2 s[62:63], s[0:1], 96")
    A("v_and_b32 v1, 63, v0\nv_lshrrev_b32 v2, 6, v0")
    A("s_nop 0\nv_readfirstlane_b32 s3, v2")
    A("s_and_b32 s28, s2, 7\ns_lshr_b32 s29, s2, 3\ns_and_b32 s32, s28, 1\ns_lshl_b32 s32, s32, 2")
    A("s_and_b32 s30, s29, 7\ns_lshr_b32 s31, s29, 3\ns_add_u32 s33, s31, s32\ns_add_u32 s34, s30, s32")
    A("s_cmp_ge_u32 s29, 24\ns_cselect_b32 s31, 3, s33\ns_cselect_b32 s30, s34, s30")
    A("s_lshr_b32 s28, s28, 1\ns_lshl_b32 s28, s28, 3\ns_add_u32 s30, s30, s28")
    A("s_lshl_b32 s64, s31, 6\ns_lshl_b32 s65, s30, 1\ns_add_u32 s64, s64, s65\ns_lshr_b32 s65, s3, 2\ns_add_u32 s64, s64, s65\ns_and_b32 s65, s3, 3")
    A("s_waitcnt lgkmcnt(0)")
    stp(0)
    A(f"s_cmp_ge_u32 s2, {NG}\ns_cbranch_scc1 {name}_prep")
    srd(A, 16, 4, 2048*896); srd(A, 20, 6, 448*3584); srd(A, 24, 10, WS_END)
    PR = 152
    A("s_lshr_b32 s36, s3, 2\ns_and_b32 s37, s3, 3")
    A(f"s_lshl_b32 s32, s31, 2\ns_add_u32 s32, s32, s37\ns_lshl_b32 s32, s32, 1\ns_add_u32 s32, s32, s36\ns_lshl_b32 s32, s32, 2\ns_lshl_b32 s33, s30, 8\ns_add_u32 s32, s32, s33\ns_add_u32 s96, s32, {WS_FL}")
    A(f"s_lshl_b32 s32, s31, 10\ns_lshl_b32 s33, s3, 7\ns_add_u32 s33, s33, s32\ns_lshl_b32 s34, s30, 2\ns_add_u32 s33, s33, s34\ns_add_u32 s97, s33, {WS_FL+8192}")
    A(f"s_lshl_b32 s33, s37, 8\ns_add_u32 s33, s33, s32\ns_lshl_b32 s34, s30, 3\ns_add_u32 s33, s33, s34\ns_lshl_b32 s34, s36, 2\ns_add_u32 s33, s33, s34\ns_add_u32 s98, s33, {WS_FL+16384}")
    A(f"s_mul_i32 s99, s30, {7*512}\ns_add_u32 s99, s99, {WS_STAT}\ns_add_u32 s43, s98, 8192")
    A(f"s_lshr_b32 s33, s30, 3\ns_lshl_b32 s33, s33, 8\ns_add_u32 s47, s33, s32\ns_add_u32 s47, s47, {WS_FL+24576}")
    def param_loads():
        A("s_lshl_b32 s38, s64, 9\ns_lshl_b32 s39, s65, 7\ns_add_u32 s38, s38, s39\nv_lshlrev_b32 v6, 1, v1\nv_add_u32 v6, s38, v6\ns_lshl_b32 s38, s64, 1\nv_mov_b32 v7, s38")
        for k in range(4): A(f"global_load_ushort {v(PR+k)}, v6, s[{48+2*k}:{49+2*k}]"); vm.issue("pp")
        A(f"global_load_ushort {v(PR+4)}, v7, s[56:57]"); vm.issue("pp")
        A(f"global_load_ushort {v(PR+5)}, v7, s[58:59]"); vm.issue("pp")
    vm = Trk(A, "vmcnt", 63); lg = Trk(A, "lgkmcnt", 15)
    A("v_lshrrev_b32 v3, 3, v0\nv_and_b32 v4, 7, v0")
    A(f"s_mul_i32 s32, s30, {64*896}")
    A(f"v_mul_u32_u24 v5, 896, v3\nv_lshl_add_u32 v5, v4, 4, v5")
    XR = 64
    for i in range(7):
        A(f"buffer_load_dwordx4 {v(XR+4*i,4)}, v5, s[16:19], s32 offen offset:{i*128}"); vm.issue("x")
    A("v_lshrrev_b32 v6, 5, v1\nv_and_b32 v7, 31, v1")
    A("v_lshl_add_u32 v8, v2, 2, v6")
    for e in range(2):
        d = 10+e
        A(f"v_add_u32 v9, {2*e}, v8")
        A(f"v_and_b32 v12, 7, v9\nv_lshlrev_b32 v12, 1, v12\nv_xor_b32 v12, v12, v7")
        A(f"v_and_b32 v13, 15, v12\nv_lshlrev_b32 v13, 4, v13")
        A(f"v_lshrrev_b32 v12, 4, v12\nv_mul_u32_u24 v12, 1792, v12")
        A(f"v_mul_u32_u24 v{d}, 3584, v9\nv_add3_u32 v{d}, v{d}, v12, v13")
    A(f"s_lshl_b32 s33, s31, 8")
    A(f"s_lshl_b32 s34, s3, 11")
    def dma(st):
        for e in range(2): dma1(st, e)
    def dma1(st, e):
        A(f"s_add_u32 m0, s34, {(st%R1)*16384+1024*e}\ns_add_u32 s35, s33, {st*32*3584}")
        A(f"buffer_load_dwordx4 v{10+e}, s[20:23], s35 offen lds"); vm.issue(f"w{st}")
    for st in range(R1): dma(st)
    param_loads()
    XF = 96
    stp(2, "p")
    vm.wait("x")
    stp(3, "p")
    for i in range(28):
        A(f"v_lshlrev_b32 {v(XF+2*i)}, 16, {v(XR+i)}\nv_and_b32 {v(XF+2*i+1)}, 0xffff0000, {v(XR+i)}")
    for c in range(4): A(f"v_pk_add_f32 {v(16+2*c,2)}, {v(XF+2*c,2)}, {v(XF+8+2*c,2)}")
    for i in range(8, 28): A(f"v_pk_add_f32 {v(16+2*(i%4),2)}, {v(16+2*(i%4),2)}, {v(XF+2*i,2)}")
    A("v_pk_add_f32 v[16:17], v[16:17], v[18:19]\nv_pk_add_f32 v[20:21], v[20:21], v[22:23]\nv_pk_add_f32 v[16:17], v[16:17], v[20:21]\nv_add_f32 v16, v16, v17")
    def red8(r):
        A(f"s_nop 1\nv_add_f32_dpp {v(r)}, {v(r)}, {v(r)} quad_perm:[1,0,3,2] row_mask:0xf bank_mask:0xf")
        A(f"s_nop 1\nv_add_f32_dpp {v(r)}, {v(r)}, {v(r)} quad_perm:[2,3,0,1] row_mask:0xf bank_mask:0xf")
        A(f"s_nop 1\nv_add_f32_dpp {v(r)}, {v(r)}, {v(r)} row_half_mirror row_mask:0xf bank_mask:0xf")
    red8(16)
    A(f"v_mul_f32 v16, {f32(1/448)}, v16\nv_mov_b32 v17, v16")
    for i in range(28):
        t = 24+2*(i%4)
        A(f"v_pk_add_f32 {v(t,2)}, {v(XF+2*i,2)}, v[16:17] neg_lo:[0,1] neg_hi:[0,1]")
        if i < 4: A(f"v_pk_mul_f32 {v(32+2*i,2)}, {v(t,2)}, {v(t,2)}")
        else: A(f"v_pk_fma_f32 {v(32+2*(i%4),2)}, {v(t,2)}, {v(t,2)}, {v(32+2*(i%4),2)}")
    A("v_pk_add_f32 v[32:33], v[32:33], v[34:35]\nv_pk_add_f32 v[36:37], v[36:37], v[38:39]\nv_pk_add_f32 v[32:33], v[32:33], v[36:37]\nv_add_f32 v32, v32, v33")
    red8(32)
    A(f"v_mul_f32 v32, {f32(1/448)}, v32")
    bf16r(A, 32, 32)
    A(f"v_add_f32 v32, {f32(1e-5)}, v32"); bf16r(A, 32, 32)
    A("v_sqrt_f32 v32, v32\ns_nop 0"); bf16r(A, 32, 32)
    A("v_rcp_f32 v18, v32")
    bf16r(A, 16, 16)
    A("v_mov_b32 v17, v16")
    A("v_fma_f32 v19, -v32, v18, 1.0\nv_fma_f32 v18, v19, v18, v18\nv_mov_b32 v19, v18")
    A("v_lshrrev_b32 v20, 2, v4\nv_lshlrev_b32 v20, 2, v20\nv_and_b32 v21, 1, v4\nv_lshl_add_u32 v20, v21, 1, v20")
    A("v_bfe_u32 v21, v3, 1, 3\nv_xor_b32 v22, v20, v21\nv_xor_b32 v23, 1, v22")
    A("v_bfe_u32 v21, v4, 1, 1\nv_lshlrev_b32 v21, 3, v21")
    A(f"v_mul_u32_u24 v24, 896, v3\nv_add3_u32 v24, v24, v21, {XN}" if False else f"v_mul_u32_u24 v24, 896, v3\nv_add_u32 v24, v24, v21\nv_add_u32 v24, {XN}, v24")
    A("v_lshl_add_u32 v22, v22, 4, v24\nv_lshl_add_u32 v23, v23, 4, v24")
    for i in range(28):
        p = XF+2*i
        A(f"v_pk_add_f32 {v(p,2)}, {v(p,2)}, v[16:17] neg_lo:[0,1] neg_hi:[0,1]")
        A(f"v_cvt_pk_bf16_f32 {v(XR+i)}, {v(p)}, {v(p+1)}")
        A(f"v_lshlrev_b32 {v(p)}, 16, {v(XR+i)}\nv_and_b32 {v(p+1)}, 0xffff0000, {v(XR+i)}")
        A(f"v_pk_mul_f32 {v(p,2)}, {v(p,2)}, v[18:19]")
        A(f"v_cvt_pk_bf16_f32 {v(XR+i)}, {v(p)}, {v(p+1)}")
        if i % 4 == 3:
            j = i//4
            A(f"ds_write_b64 v22, {v(XR+4*j,2)} offset:{j*128}\nds_write_b64 v23, {v(XR+4*j+2,2)} offset:{j*128}")
    stp(4, "p")
    A("v_and_b32 v3, 15, v1\nv_lshrrev_b32 v4, 4, v1")
    A("s_lshr_b32 s36, s3, 2\ns_and_b32 s37, s3, 3")
    A("s_lshl_b32 s38, s36, 5\nv_add_u32 v5, s38, v3")
    AA = 12
    for mb in range(2):
        A(f"v_add_u32 v6, {16*mb}, v5\nv_bfe_u32 v7, v6, 1, 3\nv_xor_b32 v7, v7, v4")
        A(f"v_mul_u32_u24 v6, 896, v6\nv_add_u32 v6, {XN}, v6\nv_lshl_add_u32 {v(AA+2*mb)}, v7, 4, v6")
        A(f"v_xor_b32 v7, 4, v7\nv_lshl_add_u32 {v(AA+2*mb+1)}, v7, 4, v6")
    A("v_lshrrev_b32 v6, 2, v1")
    A("v_and_b32 v7, 7, v6\nv_lshlrev_b32 v7, 1, v7")
    A("v_bfe_u32 v8, v1, 1, 1\ns_lshl_b32 s38, s37, 2\nv_add_u32 v8, s38, v8")
    A("v_xor_b32 v8, v8, v7\nv_and_b32 v9, 1, v1\nv_lshlrev_b32 v9, 3, v9\nv_lshl_add_u32 v9, v6, 9, v9")
    A("v_lshl_add_u32 v16, v8, 4, v9\nv_xor_b32 v17, 32, v16\nv_add_u32 v29, 65536, v16\nv_add_u32 v30, 65536, v17")
    A("v_bfe_u32 v6, v1, 2, 2\nv_lshl_add_u32 v6, v4, 3, v6\ns_lshl_b32 s38, s36, 5\nv_add_u32 v6, s38, v6")
    A("v_and_b32 v7, 3, v1\ns_lshr_b32 s38, s37, 1\ns_lshl_b32 s38, s38, 2\nv_add_u32 v7, s38, v7")
    A(f"s_and_b32 s38, s37, 1\ns_lshl_b32 s38, s38, 3\ns_lshl_b32 s39, s31, 7\ns_add_u32 s38, s38, s39\ns_add_u32 s38, s38, {XN}")
    for h in range(2):
        A(f"v_add_u32 v8, {4*h}, v6\nv_bfe_u32 v9, v8, 1, 3\nv_xor_b32 v9, v9, v7\nv_mul_u32_u24 v8, 896, v8\nv_lshl_add_u32 v8, v9, 4, v8\nv_add_u32 {v(18+h)}, s38, v8")
    A("s_lshl_b32 s38, s31, 6\ns_lshl_b32 s39, s37, 4\ns_add_u32 s38, s38, s39\nv_add_u32 v8, s38, v3\nv_lshlrev_b32 v8, 12, v8")
    A("s_lshl_b32 s38, s30, 7\ns_lshl_b32 s39, s36, 6\ns_add_u32 s38, s38, s39\nv_lshl_add_u32 v8, v4, 4, v8\nv_add_u32 v20, s38, v8")
    ACC = 32
    for i in range(32): A(f"v_mov_b32 {v(ACC+i)}, 0")
    vm.wait("w1")
    A("s_waitcnt lgkmcnt(0)\ns_barrier")
    A("ds_read_b64_tr_b16 v[24:25], v18\nds_read_b64_tr_b16 v[26:27], v19")
    FB = 64
    def frags(ks):
        b = FB + (ks % 3)*24
        for mb in range(2):
            A(f"ds_read_b128 {v(b+4*mb,4)}, {v(AA+2*mb+(ks%2))} offset:{(ks//2)*128}"); lg.issue(f"f{ks}")
        for zh in range(2):
            for bi in range(2):
                for h in range(2):
                    A(f"ds_read_b64_tr_b16 {v(b+8+(zh*2+bi)*4+2*h,2)}, {v((16 if ks%R1 < 4 else 29)+bi)} offset:{(ks%R1%4)*16384+zh*256+h*8192}"); lg.issue(f"f{ks}")
    stp(5, "p")
    lg.issue("xnt"); lg.issue("xnt")
    frags(0)
    lg.wait("xnt")
    A(f"buffer_store_dwordx4 v[24:27], v20, s[24:27], 0 offen sc1"); vm.issue("xnt")
    frags(1)
    A("v_and_b32 v21, 7, v1\nv_lshlrev_b32 v21, 2, v21\nv_lshlrev_b32 v22, 2, v1")
    for ks in range(14):
        if ks+2 < 14: vm.wait(f"w{ks+2}")
        if ks == 6:
            vm.wait("dbg")
            A(f"s_cmp_lg_u32 s3, 0\ns_cbranch_scc1 {name}_np2"); check(28, "global_load_dword v28, v21, s[8:9] sc1", cmpv="0x01010101"); A.label(f"{name}_np2")
        lg.wait(f"f{ks}")
        if ks+2 < 14: A("s_barrier"); frags(ks+2)
        b = FB + (ks % 3)*24
        if ks == 2:
            A(f"s_cmp_lg_u32 s3, 0\ns_cbranch_scc1 {name}_np1\nglobal_load_dword v28, v21, s[8:9] sc1\ns_branch {name}_np1b")
            A.label(f"{name}_np1"); A("global_load_dword v28, v21, s[58:59]"); A.label(f"{name}_np1b"); vm.issue("dbg")
        if ks == 6: setflag("s43"); vm.issue("arr")
        if ks == 7: stp(6, "p")
        if ks == 12:
            A("buffer_load_dword v28, v22, s[24:27], s47 offen sc1")
        for mb in range(2):
            for bi in range(2):
                A(f"v_mfma_f32_16x16x32_bf16 {v(ACC+16+(mb*2+bi)*4,4)}, {v(b+4*mb,4)}, {v(b+8+(2+bi)*4,4)}, {v(ACC+16+(mb*2+bi)*4,4)}")
                A(f"v_mfma_f32_16x16x32_bf16 {v(ACC+(mb*2+bi)*4,4)}, {v(b+8+bi*4,4)}, {v(b+4*mb,4)}, {v(ACC+(mb*2+bi)*4,4)}")
                if mb == 0 and ks+R1 < 14: dma1(ks+R1, bi)
    stp(2); stp(2, "a"); stp(7, "p")
    A(f"v_mov_b32 v31, {f32(GC1)}\ns_nop 7")
    Z2 = list(range(ACC+16, ACC+32)); Z1 = list(range(ACC, ACC+16))
    TMP = list(range(64, 80)); P2 = list(range(80, 88)); P1 = list(range(136, 144))
    gelu_block(A, Z2, TMP, 31, P2)
    for i in range(0, 16, 2):
        A(f"v_lshlrev_b32 {v(Z2[i])}, 16, {v(P2[i//2])}\nv_and_b32 {v(Z2[i+1])}, 0xffff0000, {v(P2[i//2])}")
    for mb in range(2):
        for i in range(4):
            a0 = Z2[(mb*2)*4+i]; a1 = Z2[(mb*2+1)*4+i]
            A(f"v_add_f32 {v(96+mb*4+i)}, {v(a0)}, {v(a1)}\nv_mul_f32 {v(104+mb*4+i)}, {v(a0)}, {v(a0)}\nv_fmac_f32 {v(104+mb*4+i)}, {v(a1)}, {v(a1)}")
    for sh in (1, 2, 4, 8):
        for r in range(96, 112):
            A(f"v_add_f32_dpp {v(r)}, {v(r)}, {v(r)} row_ror:{sh} row_mask:0xf bank_mask:0xf")
    A(f"s_lshl_b32 s38, s37, 9\ns_lshl_b32 s39, s36, 8\ns_add_u32 s38, s38, s39\ns_add_u32 s38, s38, {ST}\nv_lshlrev_b32 v6, 5, v4\nv_add_u32 v6, s38, v6")
    A("v_cmp_eq_u32 vcc, 0, v3\ns_and_saveexec_b64 s[40:41], vcc")
    for mb in range(2):
        for i in range(4):
            A(f"ds_write2_b32 v6, {v(96+mb*4+i)}, {v(104+mb*4+i)} offset0:{mb*32+i*2} offset1:{mb*32+i*2+1}")
    A("s_mov_b64 exec, s[40:41]")
    stp(3, "a")
    A("s_waitcnt vmcnt(0) lgkmcnt(0)\ns_barrier")
    A(f"s_cmp_lg_u32 s3, 0\ns_cbranch_scc1 {name}_nopub")
    A(f"v_lshlrev_b32 v6, 3, v1\nv_add_u32 v7, {ST}, v6")
    for wn in range(4): A(f"ds_read_b64 {v(96+2*wn,2)}, v7 offset:{wn*512}")
    A(f"s_lshl_b32 s39, s31, 9\ns_add_u32 s38, s99, s39")
    A("s_waitcnt lgkmcnt(0)\nv_pk_add_f32 v[96:97], v[96:97], v[98:99]\nv_pk_add_f32 v[100:101], v[100:101], v[102:103]\nv_pk_add_f32 v[96:97], v[96:97], v[100:101]")
    A("buffer_store_dwordx2 v[96:97], v6, s[24:27], s38 offen sc1")
    A.label(f"{name}_nopub")
    stp(4, "a")
    check(28, "buffer_load_dword v28, v22, s[24:27], s47 offen sc1")
    UR = 216; XE = 252
    A(f"s_lshl_b32 s33, s64, 12\ns_add_u32 s68, s10, s33\ns_addc_u32 s69, s11, 0\ns_mov_b32 s70, 4096\ns_mov_b32 s71, 0x20000")
    A(f"s_cmp_eq_u32 s65, 0\ns_cselect_b32 s33, 0, {-(512+32) & 0xffffffff}\nv_lshlrev_b32 v7, 6, v1\nv_add_u32 v7, s33, v7")
    for c in range(7): A(f"v_add_u32 v{10+c}, {16*c}, v7")
    for c in range(7): A(f"buffer_load_dwordx4 {v(UR+4*c,4)}, v{10+c}, s[68:71], 0 offen")
    A("v_lshlrev_b32 v2, 5, v3\nv_lshl_add_u32 v2, v4, 3, v2\ns_lshl_b32 s33, s65, 10\nv_add_u32 v2, s33, v2")
    for t in range(2): A(f"buffer_load_dwordx2 {v(XE+2*t,2)}, v2, s[68:71], 0 offen offset:{512*t}")
    for i in range(0, 16, 2): A(f"v_cvt_pk_bf16_f32 {v(P1[i//2])}, {v(Z1[i])}, {v(Z1[i+1])}")
    stp(5, "a")
    A(f"s_mul_i32 s66, s3, {STG}\nv_lshl_add_u32 v8, v1, 2, s66\nv_mul_u32_u24 v9, {PITCH}, v3\nv_lshl_add_u32 v9, v4, 4, v9\nv_add_u32 v9, s66, v9")
    for r in range(PR, PR+6): A(f"v_lshlrev_b32 v{r}, 16, v{r}")
    z = PR; DT = PR+4
    A(f"v_mul_f32 {v(DT)}, {f32(LOG2E)}, {v(DT)}\nv_exp_f32 {v(DT)}, {v(DT)}\nv_mul_f32 {v(z)}, {f32(LOG2E)}, {v(z)}\nv_exp_f32 {v(z)}, {v(z)}")
    A(f"v_max_f32_e64 v20, |{v(z+2)}|, |{v(z+3)}|")
    bf16r(A, DT, DT); bf16r(A, z, z)
    for sh in (1, 2, 4, 8):
        A(f"s_nop 1\nv_max_f32_dpp v20, v20, v20 row_ror:{sh} row_mask:0xf bank_mask:0xf")
    A(f"s_nop 1\nv_readlane_b32 s34, v20, 0\nv_readlane_b32 s35, v20, 16\nv_readlane_b32 s38, v20, 32\nv_readlane_b32 s39, v20, 48\nv_readfirstlane_b32 s72, {v(DT)}\nv_readfirstlane_b32 s73, {v(PR+5)}")
    A(f"s_max_u32 s34, s34, s35\ns_max_u32 s38, s38, s39\ns_max_u32 s34, s34, s38\ns_max_u32 s34, s34, {f32(1e-30)}\nv_rcp_f32 v21, s34")
    A(f"v_mul_f32 {v(z)}, {v(z)}, {v(DT)}\nv_mul_f32 {v(z+1)}, {v(z+1)}, {v(DT)}")
    A(f"v_mul_f32 {v(z)}, {f32(-LOG2E)}, {v(z)}\nv_mul_f32 {v(z+1)}, {f32(1/(2*math.pi))}, {v(z+1)}")
    A(f"v_mul_f32 {v(z+2)}, {v(z+2)}, v21\nv_mul_f32 {v(z+3)}, {v(z+3)}, v21")
    KD = 160; E1, E8, E128 = 172, 174, 176; G = 180; LO = 196; T0, T1 = 198, 200; CV = 204; FR = 64
    cvn = [0]
    def put(row, X, neg):
        c = CV + cvn[0] % 8; cvn[0] += 1
        return [f"v_cvt_pk_f16_f32 {v(c)}, {v(X)}, {'-' if neg else ''}{v(X+1)}", f"ds_write_b32 v8, {v(c)} offset:{row*PITCH}"]
    for E, m in ((E1, 1.0), (E8, 8.0), (E128, 128.0)):
        A(f"v_mul_f32 v178, {f32(m)}, {v(z)}\nv_mul_f32 v179, {f32(m)}, {v(z+1)}\nv_exp_f32 v178, v178\nv_fract_f32 v179, v179\nv_cos_f32 {v(E)}, v179\nv_sin_f32 {v(E+1)}, v179\ns_nop 0")
        A(f"v_mul_f32 {v(E)}, {v(E)}, v178\nv_mul_f32 {v(E+1)}, {v(E+1)}, v178")
    A(f"v_mov_b32 v212, 0x3c00\nds_write_b32 v8, v212 offset:{41*PITCH}")
    steps_lo = [("L", 42, E8, None)] + [("L", 41+l, LO, (LO, E8 if l == 2 else LO, E8)) for l in range(2, 16)]
    steps_hi = [("H", 0, z+2, None)]
    for b in range(1, 8): steps_hi.append(("H", b, G+2*b, (G+2*b, (z+2) if b == 1 else G+2*(b-1), E1)))
    for b in range(8): steps_hi.append(("H", 8+b, G+2*b, (G+2*b, (z+2) if b == 0 else G+2*b, E128)))
    for a_ in range(2):
        for b in range(4): steps_hi.append(("H", 16+4*a_+b, G+4*b, (G+4*b, G+4*b, E128)))
    for a_ in range(4):
        for b in range(2): steps_hi.append(("H", 24+2*a_+b, G+8*b, (G+8*b, G+8*b, E128)))
    for a_ in range(9): steps_hi.append(("H", 32+a_, G, (G, G, E128)))
    seq = []; il = 0
    for i, sh_ in enumerate(steps_hi):
        seq.append(sh_)
        if (i < 7 and i % 2 == 0) or i >= 24:
            if il < len(steps_lo): seq.append(steps_lo[il]); il += 1
    while il < len(steps_lo): seq.append(steps_lo[il]); il += 1
    pend = []
    SR = 32
    def statloads():
        for c in range(7): A(f"buffer_load_dwordx2 {v(SR+2*c,2)}, v10, s[24:27], s99 offen offset:{c*512} sc1")
    A("v_lshlrev_b32 v10, 3, v1")
    for n_, (kind, row, X, mul) in enumerate(seq):
        if n_ == STI:
            A(f"s_cmp_lg_u32 s3, 0\ns_cbranch_scc1 {name}_nsl"); statloads(); A.label(f"{name}_nsl")
        if mul:
            m = cmul(mul[0], mul[1], mul[2], T0 if kind == "H" else T1)
            A(m[0])
            for l in pend: A(l)
            A(m[1])
        else:
            for l in pend: A(l)
        pend = put(row, X, kind == "L")
    for l in pend: A(l)
    A("s_waitcnt lgkmcnt(0)"); lg.q = []
    stp(6, "a")
    for j in range(4):
        A(f"ds_read_b128 {v(FR+j*16+12,4)}, v9 offset:{41*PITCH+j*64}"); lg.issue(f"k{j}")
        for blk in range(3):
            A(f"ds_read_b128 {v(FR+j*16+4*blk,4)}, v9 offset:{blk*16*PITCH+j*64}"); lg.issue(f"k{j}")
    for j in range(4):
        lg.wait(f"k{j}")
        for blk in range(3):
            c = "0" if j == 0 else v(KD+4*blk,4)
            A(f"v_mfma_f32_16x16x32_f16 {v(KD+4*blk,4)}, {v(FR+j*16+4*blk,4)}, {v(FR+j*16+12,4)}, {c}")
    A(f"v_lshl_add_u32 v8, v1, 4, s66\nv_mov_b32 v22, s34\nv_mov_b32 v23, s66\ns_nop 7")
    for i in range(12): A(f"v_mul_f32 {v(KD+i)}, s34, {v(KD+i)}")
    for blk in range(3): A(f"ds_write_b128 v8, {v(KD+4*blk,4)} offset:{blk*1024}")
    A(f"ds_write_b32 v23, v22 offset:3072")
    stp(7, "a")
    A(f"s_cmp_lg_u32 s3, 0\ns_cbranch_scc1 {name}_nopoll")
    A("s_mov_b32 s42, 0")
    A.label(f"{name}_sp")
    A(f"s_waitcnt vmcnt(0)\nv_max3_u32 v6, {v(SR)}, {v(SR+1)}, {v(SR+2)}")
    for c in range(3, 13, 2): A(f"v_max3_u32 v6, v6, {v(SR+c)}, {v(SR+c+1)}")
    A(f"v_max_u32 v6, v6, {v(SR+13)}\nv_cmp_eq_u32 vcc, -1, v6")
    A(f"s_add_u32 s42, s42, 1\ns_cmp_gt_u32 s42, 30000\ns_cbranch_scc1 {name}_spd\ns_cmp_eq_u64 vcc, 0\ns_cbranch_scc1 {name}_spd\ns_sleep {SLP}")
    statloads()
    A(f"s_branch {name}_sp")
    A.label(f"{name}_spd")
    A(f"v_pk_add_f32 v[96:97], {v(SR,2)}, {v(SR+2,2)}\nv_mov_b32 v6, v10")
    for c in range(2, 7): A(f"v_pk_add_f32 v[96:97], v[96:97], {v(SR+2*c,2)}")
    A(f"v_mul_f32 v96, {f32(1/896)}, v96\nv_mul_f32 v97, {f32(1/896)}, v97\nv_fma_f32 v97, -v96, v96, v97\nv_max_f32 v97, 0, v97")
    bf16r(A, 97, 97); A(f"v_add_f32 v97, {f32(1e-5)}, v97"); bf16r(A, 97, 97)
    A("v_sqrt_f32 v97, v97\ns_nop 0"); bf16r(A, 97, 97)
    A("v_rcp_f32 v98, v97"); bf16r(A, 96, 96)
    A("v_fma_f32 v99, -v97, v98, 1.0\nv_fma_f32 v97, v99, v98, v98")
    A(f"v_add_u32 v6, {ST2}, v6\nds_write_b64 v6, v[96:97]")
    A.label(f"{name}_nopoll")
    A("s_waitcnt lgkmcnt(0)\ns_barrier")
    stp(3); stp(2, "b")
    vm.q = []
    A(f"s_lshl_b32 s38, s36, 8\ns_add_u32 s38, s38, {ST2}\nv_lshlrev_b32 v6, 5, v4\nv_add_u32 v6, s38, v6")
    for mb in range(2):
        A(f"ds_read_b128 {v(96+mb*8,4)}, v6 offset:{mb*128}\nds_read_b128 {v(100+mb*8,4)}, v6 offset:{mb*128+16}")
    A("s_waitcnt lgkmcnt(0)")
    for mb in range(2):
        for bi in range(2):
            zz = Z2[(mb*2+bi)*4:(mb*2+bi)*4+4]; p = P2[(mb*2+bi)*2:(mb*2+bi)*2+2]
            for i in range(4): A(f"v_sub_f32 {v(zz[i])}, {v(zz[i])}, {v(96+mb*8+2*i)}")
            for h in range(2): A(f"v_cvt_pk_bf16_f32 {v(p[h])}, {v(zz[2*h])}, {v(zz[2*h+1])}")
            for h in range(2): A(f"v_lshlrev_b32 {v(zz[2*h])}, 16, {v(p[h])}\nv_and_b32 {v(zz[2*h+1])}, 0xffff0000, {v(p[h])}")
            for i in range(4): A(f"v_mul_f32 {v(zz[i])}, {v(zz[i])}, {v(96+mb*8+2*i+1)}")
            for h in range(2): A(f"v_cvt_pk_bf16_f32 {v(64+bi*4+mb*2+h)}, {v(zz[2*h])}, {v(zz[2*h+1])}")
    A("s_nop 1")
    for bi in range(2):
        for h in range(2): A(f"v_permlane32_swap_b32 {v(64+bi*4+h)}, {v(64+bi*4+2+h)}")
    A("s_nop 1")
    for bi in range(2):
        for h in range(2): A(f"v_permlane16_swap_b32 {v(64+bi*4+h)}, {v(64+bi*4+2+h)}")
    A(f"s_lshl_b32 s35, s31, 2\ns_add_u32 s35, s35, s37\ns_lshl_b32 s38, s35, 6\ns_lshl_b32 s39, s30, 1\ns_add_u32 s38, s38, s39\ns_add_u32 s38, s38, s36\ns_lshl_b32 s38, s38, 11\ns_add_u32 s38, s38, {WS_Z2F}")
    A("v_lshlrev_b32 v5, 4, v1\ns_waitcnt vmcnt(0)")
    for bi in range(2):
        A(f"buffer_store_dwordx4 {v(64+bi*4,4)}, v5, s[24:27], s38 offen offset:{bi*1024} sc1"); vm.issue("z2")
    stp(3, "b")
    A(f"s_mul_i32 s66, s36, {4*STG}\nv_add_u32 v8, s66, v5\nv_mov_b32 v9, s66")
    for pw in range(4):
        for blk in range(3): A(f"ds_read_b128 {v(32+pw*12+4*blk,4)}, v8 offset:{pw*STG+blk*1024}")
        A(f"ds_read_b32 {v(80+pw)}, v9 offset:{pw*STG+3072}")
    KD = 20
    A("s_waitcnt lgkmcnt(0)\nv_max3_f32 v80, v80, v81, v82\nv_max_f32 v80, v80, v83\nv_rcp_f32 v81, v80")
    for i in range(0, 12, 2):
        A(f"v_pk_add_f32 {v(32+i,2)}, {v(32+i,2)}, {v(44+i,2)}\nv_pk_add_f32 {v(56+i,2)}, {v(56+i,2)}, {v(68+i,2)}")
    for i in range(0, 12, 2): A(f"v_pk_add_f32 {v(32+i,2)}, {v(32+i,2)}, {v(56+i,2)}")
    for i in range(12): A(f"v_mul_f32 {v(KD+i)}, {v(32+i)}, v81")
    A("v_mul_f32 v80, s72, v80\nv_add_f32 v80, v80, v80\ns_nop 0\nv_readfirstlane_b32 s74, v80")
    A(f"v_readlane_b32 s44, {v(KD+4)}, 0\nv_readlane_b32 s45, {v(KD+4)}, 32\nv_readlane_b32 s46, {v(KD+8)}, 0\nv_mov_b32 v9, 0")
    A("s_barrier")
    stp(4, "b")
    srd(A, 20, 14, 2048*4096)
    A("v_lshrrev_b32 v6, 3, v1\ns_lshl_b32 s32, s3, 3\nv_add_u32 v6, s32, v6\nv_and_b32 v7, 7, v1\nv_bfe_u32 v8, v6, 1, 3\nv_xor_b32 v8, v8, v7\nv_lshlrev_b32 v6, 12, v6\nv_lshl_add_u32 v18, v8, 4, v6")
    A(f"s_lshl_b32 s67, s30, 18\ns_lshl_b32 s75, s3, 10\ns_add_u32 s75, s75, {RING2}")
    def dma2(stg):
        A(f"s_add_u32 m0, s75, {(stg%NR)*8192}\ns_add_u32 s39, s67, {stg*128}")
        A(f"buffer_load_dwordx4 v18, s[20:23], s39 offen lds"); vm.issue(f"w{stg}")
    for stg in range(NR): dma2(stg)
    U16 = 0; KA = 4608; K16 = KA+1280; K4 = K16+384; K8 = K4+384; W16 = 8192; W4 = W16+5376; W8 = W4+8256
    YA = 0; YC = W4; YD = W8-1024
    assert W8+7296 <= CH
    A(f"s_mul_i32 s66, s36, {CH}\nv_add_u32 v8, s66, v5")
    UF = 32
    for i in range(4): A(f"v_mov_b32 {v(88+i)}, 0")
    for i in range(28): A(f"v_lshlrev_b32 {v(UF+2*i)}, 16, {v(UR+i)}\nv_and_b32 {v(UF+2*i+1)}, 0xffff0000, {v(UR+i)}")
    stp(5, "b")
    UR = 100
    P = lambda k: v(UF+k)
    def S(dst, k, r): return f"v_sub_f32 {v(dst)}, {P(k+r)}, {P(k-r-1)}"
    def prefix():
        for k in range(5, 52): A(f"v_add_f32 {P(k)}, {P(k-1)}, {P(k)}")
    def kzero(off, n16):
        A(f"v_cmp_gt_u32 vcc, {n16}, v1\ns_and_saveexec_b64 s[40:41], vcc\nds_write_b128 v8, v[88:91] offset:{off}\ns_mov_b64 exec, s[40:41]")
    hi = lambda i: '_d16_hi' if i % 2 else ''
    A(f"s_cmp_eq_u32 s65, 1\ns_cbranch_scc1 {name}_b1\ns_cmp_eq_u32 s65, 2\ns_cbranch_scc1 {name}_b2\ns_cmp_eq_u32 s65, 3\ns_cbranch_scc1 {name}_b3")
    A(f"ds_write_b128 v8, v[88:91] offset:{KA}"); kzero(KA+1024, 16); kzero(U16, 32)
    for i in range(16): A(f"v_cvt_pk_f16_f32 {v(UR+i)}, {v(UF+2*i)}, {v(UF+2*i+1)}")
    A("v_lshl_add_u32 v10, v1, 6, s66")
    for c in range(4): A(f"ds_write_b128 v10, {v(UR+4*c,4)} offset:{U16+512+16*c}")
    A(f"v_writelane_b32 v9, s44, 63\nv_sub_f32 {v(KD+3)}, {v(KD+3)}, v9")
    for i in (0, 2): A(f"v_cvt_pk_f16_f32 {v(KD+i)}, {v(KD+i)}, {v(KD+i+1)}")
    A("v_lshrrev_b32 v10, 1, v4\nv_lshlrev_b32 v10, 7, v10\nv_lshl_add_u32 v10, v3, 3, v10\nv_and_b32 v11, 1, v4\nv_lshl_add_u32 v10, v11, 2, v10")
    A(f"v_sub_u32 v10, 285, v10\nv_lshl_add_u32 v10, v10, 1, s66")
    for cp in range(2):
        for i in range(4): A(f"ds_write_b16{hi(i)} v10, {v(KD+(i//2)*2)} offset:{KA+cp*642+(3-i)*2}")
    A(f"s_branch {name}_bd")
    A.label(f"{name}_b1")
    kzero(K16, 24); prefix()
    A("v_lshl_add_u32 v10, v1, 3, s66\nv_cmp_gt_u32 vcc, 40, v1\ns_and_saveexec_b64 s[40:41], vcc")
    for phi in range(16):
        o = 100 + (phi % 2)*6
        for lam in range(2):
            k = 16+16*lam+phi
            A(S(o+2+2*lam, k-8, 3)); A(S(o+3+2*lam, k, 4))
        for lam in range(2): A(f"v_cvt_pk_f16_f32 {v(o+lam)}, {v(o+2+2*lam)}, {v(o+3+2*lam)}")
        A(f"ds_write_b64 v10, {v(o,2)} offset:{W16+phi*336}")
    A("s_mov_b64 exec, s[40:41]")
    for i in (8, 10): A(f"v_cvt_pk_f16_f32 {v(KD+i)}, {v(KD+i)}, {v(KD+i+1)}")
    A(f"v_lshl_add_u32 v10, v4, 6, v3\nv_sub_u32 v10, {111+128}, v10\nv_lshl_add_u32 v10, v10, 1, s66")
    A("v_cmp_gt_u32 vcc, 33, v1\ns_and_saveexec_b64 s[40:41], vcc")
    A(f"ds_write_b16 v10, {v(KD+8)} offset:{K16-256+96}\ns_mov_b32 exec_hi, 0")
    for i in range(1, 4): A(f"ds_write_b16{hi(i)} v10, {v(KD+8+(i//2)*2)} offset:{K16-256+(3-i)*32}")
    A(f"s_mov_b64 exec, s[40:41]\ns_branch {name}_bd")
    A.label(f"{name}_b2")
    kzero(K4, 24)
    A("v_lshl_add_u32 v10, v1, 5, s66")
    for phi in range(4):
        o = 100 + (phi % 2)*8
        for lam in range(8):
            k = 16+4*lam+phi
            A(f"v_add_f32 {v(116+lam)}, {P(k-1)}, {P(k)}")
        for lam in range(8):
            k = 16+4*lam+phi
            A(f"v_add_f32 {v(116+lam)}, {v(116+lam)}, {P(k+1)}")
        for lam in range(8):
            k = 16+4*lam+phi
            A(f"v_cvt_pk_f16_f32 {v(o+lam)}, {P(k-2)}, {v(116+lam)}")
        A(f"ds_write_b128 v10, {v(o,4)} offset:{W4+phi*2064}\nds_write_b128 v10, {v(o+4,4)} offset:{W4+phi*2064+16}")
    A(f"v_writelane_b32 v9, s45, 31\nv_sub_f32 {v(KD+7)}, {v(KD+7)}, v9")
    for i in (4, 6): A(f"v_cvt_pk_f16_f32 {v(KD+i)}, {v(KD+i)}, {v(KD+i+1)}")
    A("v_and_b32 v11, 1, v4\nv_lshlrev_b32 v11, 6, v11\nv_lshl_add_u32 v10, v3, 2, v11\nv_sub_u32 v10, 156, v10\nv_lshl_add_u32 v10, v10, 1, s66\ns_mov_b32 exec_hi, 0")
    for i in range(4): A(f"ds_write_b16{hi(i)} v10, {v(KD+4+(i//2)*2)} offset:{K4+(3-i)*2}")
    A(f"s_mov_b32 exec_hi, -1\ns_branch {name}_bd")
    A.label(f"{name}_b3")
    kzero(K8, 24); prefix()
    A("v_cmp_gt_u32 vcc, 56, v1\ns_and_saveexec_b64 s[40:41], vcc")
    for phi in range(8):
        o = 100 + (phi % 2)*12
        for lam in range(4):
            k = 16+8*lam+phi
            A(S(o+4+lam, k-4, 1)); A(S(o+8+lam, k, 2))
        for lam in range(4): A(f"v_cvt_pk_f16_f32 {v(o+lam)}, {v(o+4+lam)}, {v(o+8+lam)}")
        A(f"ds_write_b128 v8, {v(o,4)} offset:{W8+phi*912}")
    A("s_mov_b64 exec, s[40:41]")
    A(f"v_writelane_b32 v9, s46, 63\nv_sub_f32 {v(KD+7)}, {v(KD+7)}, v9")
    for i in (4, 6): A(f"v_cvt_pk_f16_f32 {v(KD+i)}, {v(KD+i)}, {v(KD+i+1)}")
    A("v_and_b32 v11, 1, v4\nv_lshlrev_b32 v11, 6, v11\nv_lshl_add_u32 v11, v3, 1, v11\nv_sub_u32 v11, 126, v11\nv_lshl_add_u32 v11, v11, 1, s66\ns_mov_b32 exec_lo, 0")
    for i in range(4): A(f"ds_write_b16{hi(i)} v11, {v(KD+4+(i//2)*2)} offset:{K8+66-64*(i//2)-2*(i%2)}")
    A("s_mov_b32 exec_lo, -1")
    A.label(f"{name}_bd")
    stp(6, "b")
    vm.wait("z2"); setflag("s97")
    stp(7, "b")
    A("s_waitcnt lgkmcnt(0)\ns_barrier")
    stp(4); stp(2, "c")
    def tfrags(dst, areg, off0, n, step):
        for d in range(n):
            o = (off0 - step*d)//4
            A(f"ds_read2_b32 {v(dst+4*d,2)}, {v(areg)} offset0:{o} offset1:{o+1}\nds_read2_b32 {v(dst+4*d+2,2)}, {v(areg)} offset0:{o+2} offset1:{o+3}")
    def mfj(ac, first, aop, bop):
        return f"v_mfma_f32_16x16x32_f16 {v(ac,4)}, {aop}, {bop}, {'0' if first else v(ac,4)}"
    JPS = int(os.environ.get("JPS", "2"))
    TB = 160; RG = 236
    ACC = 20; FB = 52
    ZS = [84, 92, 100, 108, 116, 124, 144, 152][:ZD]
    A(f"v_lshlrev_b32 v11, 2, v4\nv_sub_u32 v11, v11, v3\nv_lshlrev_b32 v11, 2, v11\nv_add_u32 v11, {K16+60}, v11\nv_add_u32 v11, s66, v11")
    A("v_lshlrev_b32 v12, 6, v3\nv_lshl_add_u32 v12, v4, 4, v12\nv_add_u32 v12, s66, v12")
    A("v_mul_u32_u24 v13, 336, v3\nv_lshl_add_u32 v13, v4, 4, v13\nv_add_u32 v13, s66, v13")
    A(f"v_lshrrev_b32 v6, 1, v3\nv_xor_b32 v6, v6, v4\ns_lshl_b32 s38, s36, 2\nv_xor_b32 v6, s38, v6\nv_lshlrev_b32 v7, 7, v3\nv_lshl_add_u32 v19, v6, 4, v7\nv_add_u32 v19, {RING2}, v19")
    A(f"s_lshl_b32 s34, s35, 17\ns_lshl_b32 s39, s36, 11\ns_add_u32 s34, s34, s39\ns_add_u32 s34, s34, {WS_Z2F}")
    A(f"s_lshl_b32 s33, s64, 12\ns_add_u32 s33, s33, {WS_AT}\ns_add_u32 s68, s10, s33\ns_addc_u32 s69, s11, 0")
    A("s_lshl_b32 s38, s30, 7\ns_lshl_b32 s39, s36, 6\ns_add_u32 s38, s38, s39\nv_lshlrev_b32 v6, 1, v3\nv_add_u32 v6, s38, v6")
    for t in range(2): A(f"global_load_ushort {v(16+t)}, v6, s[60:61] offset:{32*t}")
    A("s_lshl_b32 s33, s65, 11\nv_add_u32 v9, s33, v12\nv_add_u32 v135, 65536, v19")
    WR = 160
    A(f"s_mul_i32 s47, s31, {4*28}\ns_lshl_b32 s39, s3, 2\ns_add_u32 s47, s47, s39\ns_lshl_b32 s47, s47, 10\ns_add_u32 s47, s47, {WS_WOF}")
    def zl(stg):
        A(f"s_add_u32 s38, s34, {stg*4096}")
        for bi in range(2):
            A(f"buffer_load_dwordx4 {v(ZS[stg%ZD]+4*bi,4)}, v5, s[24:27], s38 offen offset:{bi*1024}"); vm.issue(f"z{stg}")
    GAP = int(os.environ.get("GAP", "2"))
    def zl1(stg, bi):
        A(f"s_add_u32 s38, s34, {stg*4096}\nbuffer_load_dwordx4 {v(ZS[stg%ZD]+4*bi,4)}, v5, s[24:27], s38 offen offset:{bi*1024}"); vm.issue(f"z{stg}")
    def frags2(stg):
        b = FB + (stg % 2)*16
        for tb in range(4): A(f"ds_read_b128 {v(b+tb*4,4)}, {'v19' if stg%NR < 8 else 'v135'} offset:{(stg%NR%8)*8192+tb*2048}")
    A(f"s_cmp_eq_u32 s65, 1\ns_cbranch_scc1 {name}_c1\ns_cmp_eq_u32 s65, 2\ns_cbranch_scc1 {name}_c2\ns_cmp_eq_u32 s65, 3\ns_cbranch_scc1 {name}_c3")
    NBAT = (54-PRE+JPS-1)//JPS
    for role in range(4):
        if role: A.label(f"{name}_c{role}")
        jobs = []; wr = []
        if role < 2:
            TD = TB; TT = TB+36; T16 = TB+40; AC = TB+60
            A("v_and_b32 v10, 1, v3\nv_mul_u32_u24 v10, 642, v10\nv_lshlrev_b32 v14, 3, v4\nv_sub_u32 v14, v14, v3\nv_lshl_add_u32 v10, v14, 1, v10")
            A(f"v_add_u32 v10, {KA+32}, v10\nv_add_u32 v10, s66, v10")
            tfrags(TD, 10, 512, 9, 64)
            tfrags(T16, 11, 256, 5 if role else 1, 64)
            A("v_mov_b32 v10, s46\nv_cvt_pk_f16_f32 v10, v10, v10\nv_sub_u32 v14, 5, v14\nv_and_b32 v15, 0xffff, v10\nv_and_b32 v20, 0xffff0000, v10")
            for p in range(8): A(f"v_cmp_eq_u32 {s(80+2*p,2)}, {p}, v14")
            for p in range(4): A(f"v_cndmask_b32 {v(TT+p)}, 0, v15, {s(80+4*p,2)}")
            for p in range(4): A(f"v_cndmask_b32 {v(TT+p)}, {v(TT+p)}, v20, {s(82+4*p,2)}")
            A("v_lshlrev_b32 v10, 5, v3\nv_lshl_add_u32 v10, v4, 4, v10\nv_add_u32 v10, s66, v10")
            for nb in range(4*role, 4*role+4):
                ac = AC+4*(nb % 4)
                for d in range(9):
                    dp = 1+2*d
                    if nb == 0 and dp > 15: continue
                    jobs.append((10, U16+512+512*nb-32*dp, lambda f, ac=ac, d=d: mfj(ac, d == 0, v(TD+4*d,4), v(f,4))))
                if nb >= 3: jobs.append((10, U16+512+512*nb-2048, lambda f, ac=ac: mfj(ac, False, v(TT,4), v(f,4))))
                for d in range(5):
                    if nb-3-d >= 0: jobs.append((13, W16+64*(nb-3-d), lambda f, ac=ac, d=d: mfj(ac, False, v(f,4), v(T16+4*d,4))))
                wr.append(f"ds_write_b128 v12, {v(ac,4)} offset:{YA+1024*nb}")
        elif role == 2:
            AC = TB+20
            tfrags(TB, 11, 256+384, 5, 64)
            A("v_and_b32 v10, 3, v3\nv_mul_u32_u24 v10, 2064, v10\nv_lshrrev_b32 v14, 2, v3\nv_lshl_add_u32 v10, v14, 6, v10\nv_lshl_add_u32 v10, v4, 4, v10\nv_add_u32 v10, s66, v10")
            for t in range(8):
                for d in range(5):
                    if 4*t-d >= 0: jobs.append((10, W4+64*(4*t-d), lambda f, ac=AC+4*t, d=d: mfj(ac, d == 0, v(f,4), v(TB+4*d,4))))
                wr.append(f"ds_write_b128 v8, {v(AC+4*t,4)} offset:{YC+1024*t}")
        else:
            AC = TB+20
            A("v_add_u32 v14, 768, v11")
            tfrags(TB, 14, 256, 5, 64)
            A("v_and_b32 v10, 7, v3\nv_mul_u32_u24 v10, 912, v10\nv_lshrrev_b32 v14, 3, v3\nv_lshl_add_u32 v10, v14, 6, v10\nv_lshl_add_u32 v10, v4, 4, v10\nv_add_u32 v10, s66, v10")
            A("v_lshrrev_b32 v14, 1, v4\nv_lshlrev_b32 v14, 9, v14\nv_lshl_add_u32 v14, v3, 5, v14\nv_and_b32 v15, 1, v4\nv_lshl_add_u32 v14, v15, 4, v14\nv_add_u32 v14, s66, v14")
            for t in range(1, 8):
                for d in range(5):
                    if 2*t-2-d >= 0: jobs.append((10, W8+64*(2*t-2-d), lambda f, ac=AC+4*(t-1), d=d: mfj(ac, d == 0, v(f,4), v(TB+4*d,4))))
                wr.append(f"ds_write_b128 v14, {v(AC+4*(t-1),4)} offset:{YD+1024*t}")
        pre = jobs[:PRE]; jobs = jobs[PRE:]
        lg.q = []; A("s_waitcnt lgkmcnt(0)")
        for i, jb in enumerate(pre): A(f"ds_read_b128 {v(20+4*i,4)}, {v(jb[0])} offset:{jb[1]}"); lg.issue(f"j{i}")
        for i, jb in enumerate(pre): lg.wait(f"j{i}"); A(jb[2](20+4*i))
        stp(3, "c")
        A("s_lshl_b32 s38, s30, 2\ns_sub_u32 s38, s97, s38")
        pollflags(32)
        A(f"s_mov_b32 s38, {WS_FL+31744}"); pollflags(28)
        stp(4, "c")
        vm.q = []
        for stg in range(ZD): zl(stg)
        A("s_barrier")
        stp(5); stp(5, "c")
        def cread(bt):
            for k, jb in enumerate(jobs[bt*JPS:(bt+1)*JPS]):
                A(f"ds_read_b128 {v(RG+((bt%2)*JPS+k)*4,4)}, {v(jb[0])} offset:{jb[1]}")
        frags2(0); cread(0)
        A(f"v_mov_b32 v15, {f32(GC1)}")
        Y = TB
        for stg in range(32):
            if stg+1 >= NR and stg+1 < 32: vm.wait(f"w{stg+1}")
            vm.wait(f"z{stg}")
            A("s_waitcnt lgkmcnt(0)")
            if stg+1 < 32: A("s_barrier")
            b = FB + (stg % 2)*16; zb = ZS[stg % ZD]
            mf = []
            for tb in range(4):
                for bi in range(2):
                    ac = v(ACC+(tb*2+bi)*4,4)
                    mf.append(f"v_mfma_f32_16x16x32_bf16 {ac}, {v(zb+bi*4,4)}, {v(b+tb*4,4)}, {'0' if stg == 0 else ac}")
            for k, jb in enumerate(jobs[stg*JPS:(stg+1)*JPS]): mf.append(jb[2](RG+((stg%2)*JPS+k)*4))
            fill = []
            def lds_part():
                if stg+1 < 32: frags2(stg+1)
                cread(stg+1)
                if stg == NBAT:
                    for w_ in wr: A(w_)
                if stg == NBAT+1:
                    for t in range(2):
                        for k, YY in enumerate((YA, YC) if (role == 0 and t == 0) else (YA, YC, YD)): A(f"ds_read_b128 {v(Y+(t*4+k)*4,4)}, v9 offset:{YY+1024*t}")
            fill.append(lds_part)
            if stg+NR < 32: fill.append(lambda: dma2(stg+NR))
            zs = stg+ZD-1
            if stg >= 1 and zs < 32:
                fill.append(lambda: zl1(zs, 0)); fill.append(lambda: zl1(zs, 1))
            if 24 <= stg < 32:
                for q_ in range(2):
                    n_ = (stg-24)*2+q_; j = n_//4; ks = n_ % 4
                    def wl(j=j, ks=ks):
                        A(f"s_add_u32 s38, s47, {j*28*1024}\nbuffer_load_dwordx4 {v(WR+ks*16+j*4,4)}, v5, s[24:27], s38 offen offset:{ks*1024}"); vm.issue("W")
                    fill.append(wl)
            if stg == 8: stp(7, "c")
            if 2 <= stg < 18 and stg % 2 == 0:
                pr = P1[(stg-2)//2]
                def g1(pr=pr):
                    A(f"v_lshlrev_b32 v6, 16, {v(pr)}\nv_and_b32 v7, 0xffff0000, {v(pr)}\nv_mul_f32 v132, v6, v6\nv_mul_f32 v133, v7, v7")
                    A(f"v_fmaak_f32 v132, v132, v15, {f32(GC0)}\nv_fmaak_f32 v133, v133, v15, {f32(GC0)}\nv_mul_f32 v132, v132, v6\nv_mul_f32 v133, v133, v7\nv_exp_f32 v132, v132\nv_exp_f32 v133, v133")
                def g2(pr=pr):
                    A(f"v_add_f32 v132, 1.0, v132\nv_add_f32 v133, 1.0, v133\nv_rcp_f32 v132, v132\nv_rcp_f32 v133, v133\ns_nop 0\nv_mul_f32 v6, v6, v132\nv_mul_f32 v7, v7, v133\nv_cvt_pk_bf16_f32 {v(pr)}, v6, v7")
                fill.append(g1); fill.append(g2)
            for i, m in enumerate(mf):
                A(m)
                if i % GAP == 0 and fill: fill.pop(0)()
            for f_ in fill: f_()
            if stg in (NBAT+2, NBAT+3):
                t = stg-NBAT-2
                for h in range(2):
                    y = Y+t*16+2*h; x = XE+t*2+h; tt = TB+32+4*(t*2+h)
                    if not (role == 0 and t == 0): A(f"v_pk_add_f32 {v(y+4,2)}, {v(y+4,2)}, {v(y+8,2)}")
                    A(f"v_pk_add_f32 {v(y,2)}, {v(y,2)}, {v(y+4,2)}")
                    A(f"v_mul_f32 {v(y)}, s74, {v(y)}\nv_mul_f32 {v(y+1)}, s74, {v(y+1)}")
                    A(f"v_lshlrev_b32 {v(tt)}, 16, {v(x)}\nv_and_b32 {v(tt+1)}, 0xffff0000, {v(x)}\nv_mul_f32 {v(tt)}, s73, {v(tt)}\nv_mul_f32 {v(tt+1)}, s73, {v(tt+1)}")
                    A(f"v_cvt_pk_bf16_f32 {v(x)}, {v(tt)}, {v(tt+1)}\nv_cvt_pk_bf16_f32 {v(tt+2)}, {v(y)}, {v(y+1)}")
                    A(f"v_lshlrev_b32 {v(tt)}, 16, {v(x)}\nv_and_b32 {v(tt+1)}, 0xffff0000, {v(x)}\nv_lshlrev_b32 {v(y)}, 16, {v(tt+2)}\nv_and_b32 {v(y+1)}, 0xffff0000, {v(tt+2)}")
                    A(f"v_pk_add_f32 {v(tt,2)}, {v(tt,2)}, {v(y,2)}\nv_cvt_pk_bf16_f32 {v(x)}, {v(tt)}, {v(tt+1)}")
                A(f"buffer_store_dwordx2 {v(XE+2*t,2)}, v2, s[68:71], 0 offen offset:{512*t} sc1"); vm.issue("at")
            if stg == NBAT+8 or (stg == 31 and NBAT+8 > 31): vm.wait("at"); setflag("s98")
        if role < 3: A(f"s_branch {name}_cd")
    A.label(f"{name}_cd")
    stp(6); stp(2, "d")
    A(f"s_lshl_b32 s38, s3, 12\nv_add_u32 v6, s38, v5\ns_xor_b32 s38, s3, 4\ns_lshl_b32 s38, s38, 12\nv_add_u32 v7, s38, v5")
    A(f"v_lshlrev_b32 v16, 16, v16\nv_lshlrev_b32 v17, 16, v17\ns_nop 4\ns_cmp_eq_u32 s36, 0\ns_cbranch_scc1 {name}_x0")
    for i in range(4): A(f"ds_write_b128 v6, {v(ACC+4*i,4)} offset:{1024*i}")
    for i in range(16): A(f"v_mov_b32 {v(ACC+i)}, {v(ACC+16+i)}")
    A(f"s_branch {name}_x1")
    A.label(f"{name}_x0")
    for i in range(4): A(f"ds_write_b128 v6, {v(ACC+16+4*i,4)} offset:{1024*i}")
    A.label(f"{name}_x1")
    A("s_waitcnt lgkmcnt(0)\ns_barrier")
    for i in range(4): A(f"ds_read_b128 {v(ACC+16+4*i,4)}, v7 offset:{1024*i}")
    A(f"s_lshl_b32 s39, s30, 2\ns_lshl_b32 s38, s36, 1\ns_add_u32 s39, s39, s38\ns_mul_i32 s39, s39, 28\ns_add_u32 s38, s39, s35\ns_lshl_b32 s38, s38, 10\ns_add_u32 s38, s38, {WS_HF}\ns_add_u32 s33, s38, {28*1024}")
    A("s_waitcnt lgkmcnt(0)")
    for i in range(8): A(f"v_pk_add_f32 {v(ACC+2*i,2)}, {v(ACC+2*i,2)}, {v(ACC+16+2*i,2)}")
    for tb in range(2):
        for bi in range(2):
            ac = ACC+(tb*2+bi)*4; zz = P1[(tb*2+bi)*2]; t = FB+(tb*2+bi)*6
            for h in range(2): A(f"v_cvt_pk_bf16_f32 {v(t+h)}, {v(ac+2*h)}, {v(ac+2*h+1)}")
            for h in range(2): A(f"v_lshlrev_b32 {v(ac+2*h)}, 16, {v(t+h)}\nv_and_b32 {v(ac+2*h+1)}, 0xffff0000, {v(t+h)}")
            for i in range(4): A(f"v_add_f32 {v(ac+i)}, {v(ac+i)}, {v(16+tb)}")
            for h in range(2): A(f"v_cvt_pk_bf16_f32 {v(t+h)}, {v(ac+2*h)}, {v(ac+2*h+1)}")
            for h in range(2): A(f"v_lshlrev_b32 {v(ac+2*h)}, 16, {v(t+h)}\nv_and_b32 {v(ac+2*h+1)}, 0xffff0000, {v(t+h)}")
            for h in range(2): A(f"v_lshlrev_b32 {v(t+2+2*h)}, 16, {v(zz+h)}\nv_and_b32 {v(t+3+2*h)}, 0xffff0000, {v(zz+h)}")
            for i in range(4): A(f"v_mul_f32 {v(ac+i)}, {v(ac+i)}, {v(t+2+i)}")
            for h in range(2): A(f"v_cvt_pk_bf16_f32 {v(zz+h)}, {v(ac+2*h)}, {v(ac+2*h+1)}")
        A(f"buffer_store_dwordx4 {v(P1[tb*4],4)}, v5, s[24:27], {'s33' if tb else 's38'} offen sc1")
    HR = 52; RED = 8192
    acc3 = lambda tb, j: 20+(tb*4+j)*4 if tb < 2 else 224+((tb-2)*4+j)*4
    A(f"s_lshr_b32 s32, s3, 1\ns_lshl_b32 s38, s30, 2\ns_add_u32 s38, s38, s32\ns_mul_i32 s67, s38, {16*896}\ns_lshl_b32 s38, s31, 7\ns_add_u32 s67, s67, s38\ns_and_b32 s38, s3, 1\ns_lshl_b32 s38, s38, 4\ns_add_u32 s67, s67, s38")
    A("v_mul_u32_u24 v18, 896, v3\nv_lshl_add_u32 v18, v4, 5, v18")
    A("buffer_load_dwordx4 v[12:15], v18, s[16:19], s67 offen")
    A(f"s_cmp_eq_u32 s3, 7\ns_cbranch_scc1 {name}_w7")
    A("s_lshl_b32 s39, s3, 2\ns_waitcnt vmcnt(1)")
    stp(3, "d")
    setflag("s96")
    A("s_barrier")
    A(f"s_lshl_b32 s38, s30, 8\ns_lshl_b32 s33, s3, 5\ns_add_u32 s38, s38, s33\ns_add_u32 s38, s38, {WS_FL}")
    pollflags(8)
    stp(7); stp(5, "d")
    vm.q = []
    A(f"s_mul_i32 s38, s30, {4*28}\ns_add_u32 s38, s38, s39\ns_lshl_b32 s38, s38, 10\ns_add_u32 s38, s38, {WS_HF}")
    for tb in range(1, 4): A(f"s_add_u32 s{32+tb}, s38, {tb*28*1024}")
    for ks in range(4):
        for tb in range(4):
            A(f"buffer_load_dwordx4 {v(HR+ks*16+tb*4,4)}, v5, s[24:27], {'s38' if tb == 0 else 's%d' % (32+tb)} offen offset:{ks*1024}"); vm.issue(f"k{ks}{tb}")
    for ks in range(4):
        for tb in range(4):
            vm.wait(f"k{ks}{tb}")
            for j in range(4):
                ac = v(acc3(tb, j),4)
                A(f"v_mfma_f32_16x16x32_bf16 {ac}, {v(WR+ks*16+j*4,4)}, {v(HR+ks*16+tb*4,4)}, {'0' if ks == 0 else ac}")
    stp(6, "d")
    A(f"s_lshl_b32 s38, s3, 14\ns_add_u32 s38, s38, {RED}\nv_add_u32 v7, s38, v5\ns_nop 7")
    for tb in range(4):
        for j in range(4): A(f"ds_write_b128 v7, {v(acc3(tb, j),4)} offset:{(tb*4+j)*1024}")
    A(f"s_branch {name}_w7d")
    A.label(f"{name}_w7")
    A("s_waitcnt vmcnt(1)")
    setflag("s96")
    A("s_barrier")
    A(f"s_lshl_b32 s38, s31, 10\ns_lshr_b32 s33, s30, 3\ns_lshl_b32 s33, s33, 8\ns_add_u32 s38, s38, s33\ns_add_u32 s38, s38, {WS_FL+16384}")
    pollflags(64)
    A(f"v_lshrrev_b32 v6, 3, v1\nv_and_b32 v7, 7, v1\nv_lshlrev_b32 v6, 12, v6\nv_lshl_add_u32 v6, v7, 4, v6")
    A(f"s_lshl_b32 s38, s31, 18\ns_lshl_b32 s33, s30, 7\ns_add_u32 s38, s38, s33\ns_add_u32 s38, s38, {WS_AT}")
    for i in range(8):
        A(f"s_mov_b32 m0, {i*1024}\ns_nop 0\nbuffer_load_dwordx4 v6, s[24:27], s38 offen lds\ns_add_u32 s38, s38, {8*4096}")
    A.label(f"{name}_w7d")
    A("v_bfe_u32 v6, v1, 2, 2\nv_lshl_add_u32 v6, v4, 4, v6\nv_lshlrev_b32 v6, 7, v6\nv_and_b32 v7, 3, v1\nv_lshl_add_u32 v6, v7, 3, v6\ns_lshl_b32 s38, s32, 5\ns_and_b32 s33, s3, 1\ns_lshl_b32 s33, s33, 10\ns_add_u32 s38, s38, s33\nv_add_u32 v6, s38, v6")
    srd(A, 20, 62, 2048*896)
    A(f"s_lshl_b32 s38, s3, 11\ns_add_u32 s38, s38, {RED}\nv_add_u32 v7, s38, v5\nv_add_u32 v8, 65536, v7")
    A("s_waitcnt vmcnt(0) lgkmcnt(0)\ns_barrier")
    stp(7, "d")
    for sw in range(7):
        for jj in range(2): A(f"ds_read_b128 {v(52+sw*8+jj*4,4)}, {'v7' if sw < 4 else 'v8'} offset:{(sw%4)*16384+jj*1024}")
    for jj in range(2): A(f"ds_read_b64_tr_b16 {v(112+2*jj,2)}, v6 offset:{jj*512}")
    for i in range(4): A(f"v_lshlrev_b32 {v(20+2*i)}, 16, {v(12+i)}\nv_and_b32 {v(21+2*i)}, 0xffff0000, {v(12+i)}")
    A("s_waitcnt lgkmcnt(0)")
    for i in range(4):
        A(f"v_lshlrev_b32 {v(28+2*i)}, 16, {v(112+i)}\nv_and_b32 {v(29+2*i)}, 0xffff0000, {v(112+i)}\nv_pk_add_f32 {v(20+2*i,2)}, {v(20+2*i,2)}, {v(28+2*i,2)}")
        A(f"v_cvt_pk_bf16_f32 {v(12+i)}, {v(20+2*i)}, {v(21+2*i)}\nv_lshlrev_b32 {v(20+2*i)}, 16, {v(12+i)}\nv_and_b32 {v(21+2*i)}, 0xffff0000, {v(12+i)}")
        p = lambda sw: v(52+sw*8+2*i,2)
        A(f"v_pk_add_f32 {p(0)}, {p(0)}, {p(1)}\nv_pk_add_f32 {p(2)}, {p(2)}, {p(3)}\nv_pk_add_f32 {p(4)}, {p(4)}, {p(5)}\nv_pk_add_f32 {p(0)}, {p(0)}, {p(2)}\nv_pk_add_f32 {p(4)}, {p(4)}, {p(6)}\nv_pk_add_f32 {p(0)}, {p(0)}, {p(4)}")
        A(f"v_cvt_pk_bf16_f32 {v(12+i)}, {v(52+2*i)}, {v(53+2*i)}\nv_lshlrev_b32 {v(52+2*i)}, 16, {v(12+i)}\nv_and_b32 {v(53+2*i)}, 0xffff0000, {v(12+i)}")
        A(f"v_pk_add_f32 {v(52+2*i,2)}, {v(52+2*i,2)}, {v(20+2*i,2)}\nv_cvt_pk_bf16_f32 {v(12+i)}, {v(52+2*i)}, {v(53+2*i)}")
    A("buffer_store_dwordx4 v[12:15], v18, s[20:23], s67 offen")
    if STAMPS: A("s_waitcnt vmcnt(0)"); stp(1)
    A("s_endpgm")
    A.label(f"{name}_prep")
    srd(A, 16, 12, 896*896)
    srd(A, 24, 10, WS_END)
    srd(A, 20, 14, 2048*4096)
    A(f"s_sub_u32 s30, s2, {NG}\ns_mul_i32 s31, s30, {32*896}\nv_lshlrev_b32 v3, 4, v0")
    A(f"v_mov_b32 v8, 0\nv_mov_b32 v9, 0\nv_mov_b32 v10, 0\nv_mov_b32 v11, 0\nv_mov_b32 v12, -1\nv_mov_b32 v13, -1\nv_mov_b32 v14, -1\nv_mov_b32 v15, -1")
    A(f"s_lshl_b32 s32, s30, 10\ns_add_u32 s32, s32, {WS_FL-4096}\ns_mul_i32 s33, s30, 3584\ns_add_u32 s33, s33, {WS_STAT}")
    A(f"s_cmp_lg_u32 s3, 4\ns_cbranch_scc1 {name}_cl1\nbuffer_store_dwordx4 v[8:11], v3, s[24:27], s32 offen sc1")
    A.label(f"{name}_cl1")
    A(f"s_cmp_ge_u32 s3, 4\ns_cbranch_scc1 {name}_cl2\nv_cmp_gt_u32 vcc, 224, v0\ns_and_saveexec_b64 s[40:41], vcc\nbuffer_store_dwordx4 v[12:15], v3, s[24:27], s33 offen sc1\ns_mov_b64 exec, s[40:41]")
    A.label(f"{name}_cl2")
    A(f"s_waitcnt vmcnt(0)\ns_barrier\ns_cmp_lg_u32 s3, 0\ns_cbranch_scc1 {name}_cl3")
    A("v_mov_b32 v6, s30\nv_mov_b32 v7, 1\ns_mov_b64 exec, 1\nglobal_store_byte v6, v7, s[8:9] sc1\ns_mov_b64 exec, -1")
    A.label(f"{name}_cl3")
    A(f"s_cmp_ge_u32 s30, 28\ns_cbranch_scc1 {name}_pf")
    for i in range(4):
        if i == 3: A("v_cmp_gt_u32 vcc, 256, v0\ns_and_saveexec_b64 s[40:41], vcc")
        A(f"s_add_u32 s32, s31, {i*8192}\nbuffer_load_dwordx4 {v(8+4*i,4)}, v3, s[16:19], s32 offen")
    A("s_waitcnt vmcnt(0)\nds_write_b128 v3, v[20:23] offset:24576\ns_mov_b64 exec, s[40:41]")
    for i in range(3): A(f"ds_write_b128 v3, {v(8+4*i,4)} offset:{i*8192}")
    A("s_waitcnt lgkmcnt(0)\ns_barrier")
    A("v_lshrrev_b32 v4, 2, v1\nv_mul_u32_u24 v4, 896, v4\nv_and_b32 v5, 3, v1\nv_lshl_add_u32 v4, v5, 5, v4\ns_lshr_b32 s32, s3, 2\ns_lshl_b32 s32, s32, 7\ns_and_b32 s33, s3, 3\ns_lshl_b32 s33, s33, 3\ns_add_u32 s32, s32, s33\nv_add_u32 v4, s32, v4")
    A(f"v_lshlrev_b32 v5, 4, v1\ns_mul_i32 s33, s3, {28*1024}\ns_lshl_b32 s34, s30, 10\ns_add_u32 s33, s33, s34\ns_add_u32 s33, s33, {WS_WOF}")
    for i in range(4):
        if i == 3: A(f"s_cmp_ge_u32 s3, 4\ns_cbranch_scc1 {name}_pf")
        A(f"ds_read_b64_tr_b16 {v(8+4*i,2)}, v4 offset:{i*256}\nds_read_b64_tr_b16 {v(10+4*i,2)}, v4 offset:{i*256+16*896}")
        A(f"s_add_u32 s34, s33, {i*8*28*1024}\ns_waitcnt lgkmcnt(0)\nbuffer_store_dwordx4 {v(8+4*i,4)}, v5, s[24:27], s34 offen sc1")
    A.label(f"{name}_pf")
    A(f"s_cmp_ge_u32 s30, 28\ns_cbranch_scc1 {name}_pf2")
    A(f"s_waitcnt vmcnt(0)\ns_barrier\ns_cmp_lg_u32 s3, 0\ns_cbranch_scc1 {name}_pf2")
    A("v_and_b32 v21, 7, v1\nv_lshlrev_b32 v21, 2, v21\nglobal_load_dword v28, v21, s[8:9] sc1\ns_waitcnt vmcnt(0)")
    check(28, "global_load_dword v28, v21, s[8:9] sc1", cmpv="0x01010101")
    A(f"s_lshl_b32 s33, s30, 2\ns_add_u32 s33, s33, {WS_FL+31744}"); setflag("s33")
    A.label(f"{name}_pf2")
    PFS = int(os.environ.get("PFS", "100"))
    if PFS: A(f"s_sleep {PFS}")
    A("s_and_b32 s32, s30, 7\ns_lshr_b32 s32, s32, 1\ns_lshl_b32 s32, s32, 2\ns_lshr_b32 s33, s30, 3\ns_add_u32 s32, s32, s33\ns_lshl_b32 s32, s32, 19")
    for i in range(64):
        if i >= 48: A("s_waitcnt vmcnt(47)")
        A(f"buffer_load_dwordx4 {v(24+4*(i%48),4)}, v3, s[20:23], s32 offen\ns_add_u32 s32, s32, 8192")
    A("s_waitcnt vmcnt(0)")
    stp(1)
    A.label(f"{name}_end")
    A.end_kernel(name, 256, sgpr=100)
    A.launch(name, NG+NAUX, 512, LDS)
```

```python
from gen import *
from k1 import bf16r, gelu_block, GC0, GC1, LOG2E
from ssm import cmul, PITCH
import math, os
STI = int(os.environ.get("STI", "30"))
NR = int(os.environ.get("NR", "12"))
ZD = int(os.environ.get("ZD", "8"))
PRE = int(os.environ.get("PRE", "16"))
def gen_kf(A, name, kidx, STAMPS=False):
    NG = 224; NAUX = 32
    R1 = int(os.environ.get("R1", "6"))
    XN = R1*16384
    STG = 57*PITCH
    ST = max(8*STG, XN+57344); ST2 = ST + 2048
    CH = 29184
    RING2 = 2*CH
    LDS = max(RING2 + NR*8192, 8192+7*16384, ST2+512)
    assert LDS <= 163840
    SS = os.environ.get("SS", "m")
    def stp(slot, grp="m"):
        if STAMPS and (grp == SS or slot < 2): stamp(A, kidx, slot, 10, 76, 132)
    def check(reg, reload, want_nonzero=True, cmpv=None):
        L = A.newlabel("ck"); D = A.newlabel("ckd")
        A("s_mov_b32 s42, 0")
        A.label(L)
        A(f"v_cmp_eq_u32 vcc, 0, v{reg}" if cmpv is None else f"v_cmp_ne_u32 vcc, {cmpv}, v{reg}")
        A(f"s_add_u32 s42, s42, 1\ns_cmp_gt_u32 s42, 30000\ns_cbranch_scc1 {D}")
        A(f"s_cmp_eq_u64 vcc, 0\ns_cbranch_scc1 {D}\ns_sleep 2\n{reload}\ns_waitcnt vmcnt(0)\ns_branch {L}")
        A.label(D)
    WS_FL = WS_STAT + 262144
    SLP = int(os.environ.get("SLP", "2"))
    def setflag(sreg):
        A(f"v_mov_b32 v6, {sreg}\nv_mov_b32 v7, 1\ns_mov_b64 exec, 1\nbuffer_store_dword v7, v6, s[24:27], 0 offen sc1\ns_mov_b64 exec, -1")
    def pollflags(n, stride=4):
        L = A.newlabel("pf"); D = A.newlabel("pfd")
        A(f"v_mul_u32_u24 v6, {stride}, v1\ns_mov_b32 s42, 0\ns_mov_b32 exec_hi, {0 if n < 64 else -1}\ns_mov_b32 exec_lo, {hex((1<<min(n,32))-1)}")
        A.label(L)
        A("buffer_load_dword v7, v6, s[24:27], s38 offen sc1\ns_waitcnt vmcnt(0)\nv_cmp_eq_u32 vcc, 0, v7")
        A(f"s_add_u32 s42, s42, 1\ns_cmp_gt_u32 s42, 30000\ns_cbranch_scc1 {D}")
        A(f"s_cmp_eq_u64 vcc, 0\ns_cbranch_scc1 {D}\ns_sleep {SLP}\ns_branch {L}")
        A.label(D)
        A("s_mov_b64 exec, -1")
    A.begin_kernel(name)
    A(f"s_cmp_ge_u32 s2, {NG+NAUX}\ns_cbranch_scc1 {name}_end")
    A("s_load_dwordx2 s[4:5], s[0:1], 0\ns_load_dwordx2 s[6:7], s[0:1], 64\ns_load_dwordx4 s[8:11], s[0:1], 104")
    A("s_load_dwordx2 s[12:13], s[0:1], 88\ns_load_dwordx2 s[14:15], s[0:1], 72")
    A("s_load_dwordx8 s[48:55], s[0:1], 8\ns_load_dwordx4 s[56:59], s[0:1], 40\ns_load_dwordx2 s[60:61], s[0:1], 80\ns_load_dwordx2 s[62:63], s[0:1], 96")
    A("v_and_b32 v1, 63, v0\nv_lshrrev_b32 v2, 6, v0")
    A("s_nop 0\nv_readfirstlane_b32 s3, v2")
    A("s_and_b32 s28, s2, 7\ns_lshr_b32 s29, s2, 3\ns_and_b32 s32, s28, 1\ns_lshl_b32 s32, s32, 2")
    A("s_and_b32 s30, s29, 7\ns_lshr_b32 s31, s29, 3\ns_add_u32 s33, s31, s32\ns_add_u32 s34, s30, s32")
    A("s_cmp_ge_u32 s29, 24\ns_cselect_b32 s31, 3, s33\ns_cselect_b32 s30, s34, s30")
    A("s_lshr_b32 s28, s28, 1\ns_lshl_b32 s28, s28, 3\ns_add_u32 s30, s30, s28")
    A("s_lshl_b32 s64, s31, 6\ns_lshl_b32 s65, s30, 1\ns_add_u32 s64, s64, s65\ns_lshr_b32 s65, s3, 2\ns_add_u32 s64, s64, s65\ns_and_b32 s65, s3, 3")
    A("s_waitcnt lgkmcnt(0)")
    stp(0)
    A(f"s_cmp_ge_u32 s2, {NG}\ns_cbranch_scc1 {name}_prep")
    srd(A, 16, 4, 2048*896); srd(A, 20, 6, 448*3584); srd(A, 24, 10, WS_END)
    PR = 152
    A("s_lshr_b32 s36, s3, 2\ns_and_b32 s37, s3, 3")
    A(f"s_lshl_b32 s32, s31, 2\ns_add_u32 s32, s32, s37\ns_lshl_b32 s32, s32, 1\ns_add_u32 s32, s32, s36\ns_lshl_b32 s32, s32, 2\ns_lshl_b32 s33, s30, 8\ns_add_u32 s32, s32, s33\ns_add_u32 s96, s32, {WS_FL}")
    A(f"s_lshl_b32 s32, s31, 10\ns_lshl_b32 s33, s3, 7\ns_add_u32 s33, s33, s32\ns_lshl_b32 s34, s30, 2\ns_add_u32 s33, s33, s34\ns_add_u32 s97, s33, {WS_FL+8192}")
    A(f"s_lshl_b32 s33, s37, 8\ns_add_u32 s33, s33, s32\ns_lshl_b32 s34, s30, 3\ns_add_u32 s33, s33, s34\ns_lshl_b32 s34, s36, 2\ns_add_u32 s33, s33, s34\ns_add_u32 s98, s33, {WS_FL+16384}")
    A(f"s_mul_i32 s99, s30, {7*512}\ns_add_u32 s99, s99, {WS_STAT}\ns_add_u32 s43, s98, 8192")
    A(f"s_lshr_b32 s33, s30, 3\ns_lshl_b32 s33, s33, 8\ns_add_u32 s47, s33, s32\ns_add_u32 s47, s47, {WS_FL+24576}")
    def param_loads():
        A("s_lshl_b32 s38, s64, 9\ns_lshl_b32 s39, s65, 7\ns_add_u32 s38, s38, s39\nv_lshlrev_b32 v6, 1, v1\nv_add_u32 v6, s38, v6\ns_lshl_b32 s38, s64, 1\nv_mov_b32 v7, s38")
        for k in range(4): A(f"global_load_ushort {v(PR+k)}, v6, s[{48+2*k}:{49+2*k}]"); vm.issue("pp")
        A(f"global_load_ushort {v(PR+4)}, v7, s[56:57]"); vm.issue("pp")
        A(f"global_load_ushort {v(PR+5)}, v7, s[58:59]"); vm.issue("pp")
    vm = Trk(A, "vmcnt", 63); lg = Trk(A, "lgkmcnt", 15)
    A("v_lshrrev_b32 v3, 3, v0\nv_and_b32 v4, 7, v0")
    A(f"s_mul_i32 s32, s30, {64*896}")
    A(f"v_mul_u32_u24 v5, 896, v3\nv_lshl_add_u32 v5, v4, 4, v5")
    XR = 64
    for i in range(7):
        A(f"buffer_load_dwordx4 {v(XR+4*i,4)}, v5, s[16:19], s32 offen offset:{i*128}"); vm.issue("x")
    A("v_lshrrev_b32 v6, 5, v1\nv_and_b32 v7, 31, v1")
    A("v_lshl_add_u32 v8, v2, 2, v6")
    for e in range(2):
        d = 10+e
        A(f"v_add_u32 v9, {2*e}, v8")
        A(f"v_and_b32 v12, 7, v9\nv_lshlrev_b32 v12, 1, v12\nv_xor_b32 v12, v12, v7")
        A(f"v_and_b32 v13, 15, v12\nv_lshlrev_b32 v13, 4, v13")
        A(f"v_lshrrev_b32 v12, 4, v12\nv_mul_u32_u24 v12, 1792, v12")
        A(f"v_mul_u32_u24 v{d}, 3584, v9\nv_add3_u32 v{d}, v{d}, v12, v13")
    A(f"s_lshl_b32 s33, s31, 8")
    A(f"s_lshl_b32 s34, s3, 11")
    def dma(st):
        for e in range(2): dma1(st, e)
    def dma1(st, e):
        A(f"s_add_u32 m0, s34, {(st%R1)*16384+1024*e}\ns_add_u32 s35, s33, {st*32*3584}")
        A(f"buffer_load_dwordx4 v{10+e}, s[20:23], s35 offen lds"); vm.issue(f"w{st}")
    PLK = int(os.environ.get("PLK", "3")); D0 = int(os.environ.get("D0", str(R1)))
    for st in range(D0): dma(st)
    if PLK < 0: param_loads()
    XF = 96
    stp(2, "p")
    vm.wait("x")
    stp(3, "p")
    n0 = len(A.lines)
    for st in range(D0, R1): dma(st)
    dl = A.lines[n0:]; del A.lines[n0:]
    for i in range(28):
        A(f"v_lshlrev_b32 {v(XF+2*i)}, 16, {v(XR+i)}\nv_and_b32 {v(XF+2*i+1)}, 0xffff0000, {v(XR+i)}")
    for c in range(4): A(f"v_pk_add_f32 {v(16+2*c,2)}, {v(XF+2*c,2)}, {v(XF+8+2*c,2)}")
    for i in range(8, 28): A(f"v_pk_add_f32 {v(16+2*(i%4),2)}, {v(16+2*(i%4),2)}, {v(XF+2*i,2)}")
    A("v_pk_add_f32 v[16:17], v[16:17], v[18:19]\nv_pk_add_f32 v[20:21], v[20:21], v[22:23]\nv_pk_add_f32 v[16:17], v[16:17], v[20:21]\nv_add_f32 v16, v16, v17")
    def red8(r):
        A(f"s_nop 1\nv_add_f32_dpp {v(r)}, {v(r)}, {v(r)} quad_perm:[1,0,3,2] row_mask:0xf bank_mask:0xf")
        A(f"s_nop 1\nv_add_f32_dpp {v(r)}, {v(r)}, {v(r)} quad_perm:[2,3,0,1] row_mask:0xf bank_mask:0xf")
        A(f"s_nop 1\nv_add_f32_dpp {v(r)}, {v(r)}, {v(r)} row_half_mirror row_mask:0xf bank_mask:0xf")
    red8(16)
    A(f"v_mul_f32 v16, {f32(1/448)}, v16\nv_mov_b32 v17, v16")
    for i in range(28):
        t = 24+2*(i%4)
        A(f"v_pk_add_f32 {v(t,2)}, {v(XF+2*i,2)}, v[16:17] neg_lo:[0,1] neg_hi:[0,1]")
        if i < 4: A(f"v_pk_mul_f32 {v(32+2*i,2)}, {v(t,2)}, {v(t,2)}")
        else: A(f"v_pk_fma_f32 {v(32+2*(i%4),2)}, {v(t,2)}, {v(t,2)}, {v(32+2*(i%4),2)}")
    A("v_pk_add_f32 v[32:33], v[32:33], v[34:35]\nv_pk_add_f32 v[36:37], v[36:37], v[38:39]\nv_pk_add_f32 v[32:33], v[32:33], v[36:37]\nv_add_f32 v32, v32, v33")
    red8(32)
    A(f"v_mul_f32 v32, {f32(1/448)}, v32")
    bf16r(A, 32, 32)
    A(f"v_add_f32 v32, {f32(1e-5)}, v32"); bf16r(A, 32, 32)
    A("v_sqrt_f32 v32, v32\ns_nop 0"); bf16r(A, 32, 32)
    A("v_rcp_f32 v18, v32")
    bf16r(A, 16, 16)
    A("v_mov_b32 v17, v16")
    A("v_fma_f32 v19, -v32, v18, 1.0\nv_fma_f32 v18, v19, v18, v18\nv_mov_b32 v19, v18")
    A("v_lshrrev_b32 v20, 2, v4\nv_lshlrev_b32 v20, 2, v20\nv_and_b32 v21, 1, v4\nv_lshl_add_u32 v20, v21, 1, v20")
    A("v_bfe_u32 v21, v3, 1, 3\nv_xor_b32 v22, v20, v21\nv_xor_b32 v23, 1, v22")
    A("v_bfe_u32 v21, v4, 1, 1\nv_lshlrev_b32 v21, 3, v21")
    A(f"v_mul_u32_u24 v24, 896, v3\nv_add3_u32 v24, v24, v21, {XN}" if False else f"v_mul_u32_u24 v24, 896, v3\nv_add_u32 v24, v24, v21\nv_add_u32 v24, {XN}, v24")
    A("v_lshl_add_u32 v22, v22, 4, v24\nv_lshl_add_u32 v23, v23, 4, v24")
    for i in range(28):
        p = XF+2*i
        A(f"v_pk_add_f32 {v(p,2)}, {v(p,2)}, v[16:17] neg_lo:[0,1] neg_hi:[0,1]")
        A(f"v_cvt_pk_bf16_f32 {v(XR+i)}, {v(p)}, {v(p+1)}")
        A(f"v_lshlrev_b32 {v(p)}, 16, {v(XR+i)}\nv_and_b32 {v(p+1)}, 0xffff0000, {v(XR+i)}")
        A(f"v_pk_mul_f32 {v(p,2)}, {v(p,2)}, v[18:19]")
        A(f"v_cvt_pk_bf16_f32 {v(XR+i)}, {v(p)}, {v(p+1)}")
        if i % 4 == 3:
            j = i//4
            A(f"ds_write_b64 v22, {v(XR+4*j,2)} offset:{j*128}\nds_write_b64 v23, {v(XR+4*j+2,2)} offset:{j*128}")
    nd = len(dl)//3; DSP = int(os.environ.get("DSP", "24")); ln = A.lines[n0:]; del A.lines[n0:]
    for i in range(nd): A.lines += dl[3*i:3*i+3] + ln[DSP*i:DSP*(i+1)]
    A.lines += ln[DSP*nd:]
    stp(4, "p")
    A("v_and_b32 v3, 15, v1\nv_lshrrev_b32 v4, 4, v1")
    A("s_lshr_b32 s36, s3, 2\ns_and_b32 s37, s3, 3")
    A("s_lshl_b32 s38, s36, 5\nv_add_u32 v5, s38, v3")
    AA = 12
    for mb in range(2):
        A(f"v_add_u32 v6, {16*mb}, v5\nv_bfe_u32 v7, v6, 1, 3\nv_xor_b32 v7, v7, v4")
        A(f"v_mul_u32_u24 v6, 896, v6\nv_add_u32 v6, {XN}, v6\nv_lshl_add_u32 {v(AA+2*mb)}, v7, 4, v6")
        A(f"v_xor_b32 v7, 4, v7\nv_lshl_add_u32 {v(AA+2*mb+1)}, v7, 4, v6")
    A("v_lshrrev_b32 v6, 2, v1")
    A("v_and_b32 v7, 7, v6\nv_lshlrev_b32 v7, 1, v7")
    A("v_bfe_u32 v8, v1, 1, 1\ns_lshl_b32 s38, s37, 2\nv_add_u32 v8, s38, v8")
    A("v_xor_b32 v8, v8, v7\nv_and_b32 v9, 1, v1\nv_lshlrev_b32 v9, 3, v9\nv_lshl_add_u32 v9, v6, 9, v9")
    A("v_lshl_add_u32 v16, v8, 4, v9\nv_xor_b32 v17, 32, v16\nv_add_u32 v29, 65536, v16\nv_add_u32 v30, 65536, v17")
    A("v_bfe_u32 v6, v1, 2, 2\nv_lshl_add_u32 v6, v4, 3, v6\ns_lshl_b32 s38, s36, 5\nv_add_u32 v6, s38, v6")
    A("v_and_b32 v7, 3, v1\ns_lshr_b32 s38, s37, 1\ns_lshl_b32 s38, s38, 2\nv_add_u32 v7, s38, v7")
    A(f"s_and_b32 s38, s37, 1\ns_lshl_b32 s38, s38, 3\ns_lshl_b32 s39, s31, 7\ns_add_u32 s38, s38, s39\ns_add_u32 s38, s38, {XN}")
    for h in range(2):
        A(f"v_add_u32 v8, {4*h}, v6\nv_bfe_u32 v9, v8, 1, 3\nv_xor_b32 v9, v9, v7\nv_mul_u32_u24 v8, 896, v8\nv_lshl_add_u32 v8, v9, 4, v8\nv_add_u32 {v(18+h)}, s38, v8")
    A("s_lshl_b32 s38, s31, 6\ns_lshl_b32 s39, s37, 4\ns_add_u32 s38, s38, s39\nv_add_u32 v8, s38, v3\nv_lshlrev_b32 v8, 12, v8")
    A("s_lshl_b32 s38, s30, 7\ns_lshl_b32 s39, s36, 6\ns_add_u32 s38, s38, s39\nv_lshl_add_u32 v8, v4, 4, v8\nv_add_u32 v20, s38, v8")
    ACC = 32
    for i in range(32): A(f"v_mov_b32 {v(ACC+i)}, 0")
    vm.wait("w1")
    A("s_waitcnt lgkmcnt(0)\ns_barrier")
    A("ds_read_b64_tr_b16 v[24:25], v18\nds_read_b64_tr_b16 v[26:27], v19")
    FB = 64
    def frags(ks):
        b = FB + (ks % 3)*24
        for mb in range(2):
            A(f"ds_read_b128 {v(b+4*mb,4)}, {v(AA+2*mb+(ks%2))} offset:{(ks//2)*128}"); lg.issue(f"f{ks}")
        for zh in range(2):
            for bi in range(2):
                for h in range(2):
                    A(f"ds_read_b64_tr_b16 {v(b+8+(zh*2+bi)*4+2*h,2)}, {v((16 if ks%R1 < 4 else 29)+bi)} offset:{(ks%R1%4)*16384+zh*256+h*8192}"); lg.issue(f"f{ks}")
    stp(5, "p")
    lg.issue("xnt"); lg.issue("xnt")
    frags(0)
    lg.wait("xnt")
    A(f"buffer_store_dwordx4 v[24:27], v20, s[24:27], 0 offen sc1"); vm.issue("xnt")
    frags(1)
    A("v_and_b32 v21, 7, v1\nv_lshlrev_b32 v21, 2, v21\nv_lshlrev_b32 v22, 2, v1")
    DK = int(os.environ.get("DK", "2")); CK = int(os.environ.get("CK", "6")); XL = int(os.environ.get("XL", "12"))
    for ks in range(14):
        if ks+2 < 14: vm.wait(f"w{ks+2}")
        if ks == CK:
            vm.wait("dbg")
            A(f"s_cmp_lg_u32 s3, 0\ns_cbranch_scc1 {name}_np2"); check(28, "global_load_dword v28, v21, s[8:9] sc1", cmpv="0x01010101"); A.label(f"{name}_np2")
        lg.wait(f"f{ks}")
        if ks+2 < 14: A("s_barrier"); frags(ks+2)
        b = FB + (ks % 3)*24
        if ks == DK:
            A(f"s_cmp_lg_u32 s3, 0\ns_cbranch_scc1 {name}_np1\nglobal_load_dword v28, v21, s[8:9] sc1\ns_branch {name}_np1b")
            A.label(f"{name}_np1"); A("global_load_dword v28, v21, s[58:59]"); A.label(f"{name}_np1b"); vm.issue("dbg")
        if ks == PLK: param_loads()
        if ks == CK: setflag("s43"); vm.issue("arr")
        if ks == 7: stp(6, "p")
        if ks == XL:
            A("buffer_load_dword v28, v22, s[24:27], s47 offen sc1")
        for mb in range(2):
            for bi in range(2):
                A(f"v_mfma_f32_16x16x32_bf16 {v(ACC+16+(mb*2+bi)*4,4)}, {v(b+4*mb,4)}, {v(b+8+(2+bi)*4,4)}, {v(ACC+16+(mb*2+bi)*4,4)}")
                A(f"v_mfma_f32_16x16x32_bf16 {v(ACC+(mb*2+bi)*4,4)}, {v(b+8+bi*4,4)}, {v(b+4*mb,4)}, {v(ACC+(mb*2+bi)*4,4)}")
                if mb == 0 and ks+R1 < 14: dma1(ks+R1, bi)
    if XL == 14: A("buffer_load_dword v28, v22, s[24:27], s47 offen sc1")
    stp(2); stp(2, "a"); stp(7, "p")
    A(f"v_mov_b32 v31, {f32(GC1)}\ns_nop 7")
    Z2 = list(range(ACC+16, ACC+32)); Z1 = list(range(ACC, ACC+16))
    TMP = list(range(64, 80)); P2 = list(range(80, 88)); P1 = list(range(136, 144))
    gelu_block(A, Z2, TMP, 31, P2)
    for i in range(0, 16, 2):
        A(f"v_lshlrev_b32 {v(Z2[i])}, 16, {v(P2[i//2])}\nv_and_b32 {v(Z2[i+1])}, 0xffff0000, {v(P2[i//2])}")
    for mb in range(2):
        for i in range(4):
            a0 = Z2[(mb*2)*4+i]; a1 = Z2[(mb*2+1)*4+i]
            A(f"v_add_f32 {v(96+mb*4+i)}, {v(a0)}, {v(a1)}\nv_mul_f32 {v(104+mb*4+i)}, {v(a0)}, {v(a0)}\nv_fmac_f32 {v(104+mb*4+i)}, {v(a1)}, {v(a1)}")
    for sh in (1, 2, 4, 8):
        for r in range(96, 112):
            A(f"v_add_f32_dpp {v(r)}, {v(r)}, {v(r)} row_ror:{sh} row_mask:0xf bank_mask:0xf")
    A(f"s_lshl_b32 s38, s37, 9\ns_lshl_b32 s39, s36, 8\ns_add_u32 s38, s38, s39\ns_add_u32 s38, s38, {ST}\nv_lshlrev_b32 v6, 5, v4\nv_add_u32 v6, s38, v6")
    A("v_cmp_eq_u32 vcc, 0, v3\ns_and_saveexec_b64 s[40:41], vcc")
    for mb in range(2):
        for i in range(4):
            A(f"ds_write2_b32 v6, {v(96+mb*4+i)}, {v(104+mb*4+i)} offset0:{mb*32+i*2} offset1:{mb*32+i*2+1}")
    A("s_mov_b64 exec, s[40:41]")
    stp(3, "a")
    A("s_waitcnt vmcnt(0) lgkmcnt(0)\ns_barrier")
    A(f"s_cmp_lg_u32 s3, 0\ns_cbranch_scc1 {name}_nopub")
    A(f"v_lshlrev_b32 v6, 3, v1\nv_add_u32 v7, {ST}, v6")
    for wn in range(4): A(f"ds_read_b64 {v(96+2*wn,2)}, v7 offset:{wn*512}")
    A(f"s_lshl_b32 s39, s31, 9\ns_add_u32 s38, s99, s39")
    A("s_waitcnt lgkmcnt(0)\nv_pk_add_f32 v[96:97], v[96:97], v[98:99]\nv_pk_add_f32 v[100:101], v[100:101], v[102:103]\nv_pk_add_f32 v[96:97], v[96:97], v[100:101]")
    A("buffer_store_dwordx2 v[96:97], v6, s[24:27], s38 offen sc1")
    A.label(f"{name}_nopub")
    stp(4, "a")
    check(28, "buffer_load_dword v28, v22, s[24:27], s47 offen sc1")
    UR = 216; XE = 252
    A(f"s_lshl_b32 s33, s64, 12\ns_add_u32 s68, s10, s33\ns_addc_u32 s69, s11, 0\ns_mov_b32 s70, 4096\ns_mov_b32 s71, 0x20000")
    A(f"s_cmp_eq_u32 s65, 0\ns_cselect_b32 s33, 0, {-(512+32) & 0xffffffff}\nv_lshlrev_b32 v7, 6, v1\nv_add_u32 v7, s33, v7")
    for c in range(7): A(f"v_add_u32 v{11+c}, {16*c}, v7")
    A("v_lshlrev_b32 v2, 5, v3\nv_lshl_add_u32 v2, v4, 3, v2\ns_lshl_b32 s33, s65, 10\nv_add_u32 v2, s33, v2")
    uls = [f"buffer_load_dwordx4 {v(UR+4*c,4)}, v{11+c}, s[68:71], 0 offen" for c in range(7)] + [f"buffer_load_dwordx2 {v(XE+2*t,2)}, v2, s[68:71], 0 offen offset:{512*t}" for t in range(2)]
    USP = int(os.environ.get("USP", "3"))
    if USP == 0:
        for l in uls: A(l)
        uls = []
    for i in range(0, 16, 2): A(f"v_cvt_pk_bf16_f32 {v(P1[i//2])}, {v(Z1[i])}, {v(Z1[i+1])}")
    stp(5, "a")
    A(f"s_mul_i32 s66, s3, {STG}\nv_lshl_add_u32 v8, v1, 2, s66\nv_mul_u32_u24 v9, {PITCH}, v3\nv_lshl_add_u32 v9, v4, 4, v9\nv_add_u32 v9, s66, v9")
    for r in range(PR, PR+6): A(f"v_lshlrev_b32 v{r}, 16, v{r}")
    z = PR; DT = PR+4
    A(f"v_mul_f32 {v(DT)}, {f32(LOG2E)}, {v(DT)}\nv_exp_f32 {v(DT)}, {v(DT)}\nv_mul_f32 {v(z)}, {f32(LOG2E)}, {v(z)}\nv_exp_f32 {v(z)}, {v(z)}")
    A(f"v_max_f32_e64 v20, |{v(z+2)}|, |{v(z+3)}|")
    bf16r(A, DT, DT); bf16r(A, z, z)
    for sh in (1, 2, 4, 8):
        A(f"s_nop 1\nv_max_f32_dpp v20, v20, v20 row_ror:{sh} row_mask:0xf bank_mask:0xf")
    A(f"s_nop 1\nv_readlane_b32 s34, v20, 0\nv_readlane_b32 s35, v20, 16\nv_readlane_b32 s38, v20, 32\nv_readlane_b32 s39, v20, 48\nv_readfirstlane_b32 s72, {v(DT)}\nv_readfirstlane_b32 s73, {v(PR+5)}")
    A(f"s_max_u32 s34, s34, s35\ns_max_u32 s38, s38, s39\ns_max_u32 s34, s34, s38\ns_max_u32 s34, s34, {f32(1e-30)}\nv_rcp_f32 v21, s34")
    A(f"v_mul_f32 {v(z)}, {v(z)}, {v(DT)}\nv_mul_f32 {v(z+1)}, {v(z+1)}, {v(DT)}")
    A(f"v_mul_f32 {v(z)}, {f32(-LOG2E)}, {v(z)}\nv_mul_f32 {v(z+1)}, {f32(1/(2*math.pi))}, {v(z+1)}")
    A(f"v_mul_f32 {v(z+2)}, {v(z+2)}, v21\nv_mul_f32 {v(z+3)}, {v(z+3)}, v21")
    KD = 160; E1, E8, E128 = 172, 174, 176; G = 180; LO = 196; T0, T1 = 198, 200; CV = 204; FR = 64
    cvn = [0]
    def put(row, X, neg):
        c = CV + cvn[0] % 8; cvn[0] += 1
        return [f"v_cvt_pk_f16_f32 {v(c)}, {v(X)}, {'-' if neg else ''}{v(X+1)}", f"ds_write_b32 v8, {v(c)} offset:{row*PITCH}"]
    for E, m in ((E1, 1.0), (E8, 8.0), (E128, 128.0)):
        A(f"v_mul_f32 v178, {f32(m)}, {v(z)}\nv_mul_f32 v179, {f32(m)}, {v(z+1)}\nv_exp_f32 v178, v178\nv_fract_f32 v179, v179\nv_cos_f32 {v(E)}, v179\nv_sin_f32 {v(E+1)}, v179\ns_nop 0")
        A(f"v_mul_f32 {v(E)}, {v(E)}, v178\nv_mul_f32 {v(E+1)}, {v(E+1)}, v178")
    A(f"v_mov_b32 v212, 0x3c00\nds_write_b32 v8, v212 offset:{41*PITCH}")
    steps_lo = [("L", 42, E8, None)] + [("L", 41+l, LO, (LO, E8 if l == 2 else LO, E8)) for l in range(2, 16)]
    steps_hi = [("H", 0, z+2, None)]
    for b in range(1, 8): steps_hi.append(("H", b, G+2*b, (G+2*b, (z+2) if b == 1 else G+2*(b-1), E1)))
    for b in range(8): steps_hi.append(("H", 8+b, G+2*b, (G+2*b, (z+2) if b == 0 else G+2*b, E128)))
    for a_ in range(2):
        for b in range(4): steps_hi.append(("H", 16+4*a_+b, G+4*b, (G+4*b, G+4*b, E128)))
    for a_ in range(4):
        for b in range(2): steps_hi.append(("H", 24+2*a_+b, G+8*b, (G+8*b, G+8*b, E128)))
    for a_ in range(9): steps_hi.append(("H", 32+a_, G, (G, G, E128)))
    seq = []; il = 0
    for i, sh_ in enumerate(steps_hi):
        seq.append(sh_)
        if (i < 7 and i % 2 == 0) or i >= 24:
            if il < len(steps_lo): seq.append(steps_lo[il]); il += 1
    while il < len(steps_lo): seq.append(steps_lo[il]); il += 1
    pend = []
    SR = 32
    def statloads():
        for c in range(7): A(f"buffer_load_dwordx2 {v(SR+2*c,2)}, v10, s[24:27], s99 offen offset:{c*512} sc1")
    A("v_lshlrev_b32 v10, 3, v1")
    for n_, (kind, row, X, mul) in enumerate(seq):
        if uls and n_ % USP == 0: A(uls.pop(0))
        if n_ == STI:
            A(f"s_cmp_lg_u32 s3, 0\ns_cbranch_scc1 {name}_nsl"); statloads(); A.label(f"{name}_nsl")
        if mul:
            m = cmul(mul[0], mul[1], mul[2], T0 if kind == "H" else T1)
            A(m[0])
            for l in pend: A(l)
            A(m[1])
        else:
            for l in pend: A(l)
        pend = put(row, X, kind == "L")
    for l in pend: A(l)
    A("s_waitcnt lgkmcnt(0)"); lg.q = []
    stp(6, "a")
    for j in range(4):
        A(f"ds_read_b128 {v(FR+j*16+12,4)}, v9 offset:{41*PITCH+j*64}"); lg.issue(f"k{j}")
        for blk in range(3):
            A(f"ds_read_b128 {v(FR+j*16+4*blk,4)}, v9 offset:{blk*16*PITCH+j*64}"); lg.issue(f"k{j}")
    for j in range(4):
        lg.wait(f"k{j}")
        for blk in range(3):
            c = "0" if j == 0 else v(KD+4*blk,4)
            A(f"v_mfma_f32_16x16x32_f16 {v(KD+4*blk,4)}, {v(FR+j*16+4*blk,4)}, {v(FR+j*16+12,4)}, {c}")
    A(f"v_lshl_add_u32 v8, v1, 4, s66\nv_mov_b32 v22, s34\nv_mov_b32 v23, s66\ns_nop 7")
    for i in range(12): A(f"v_mul_f32 {v(KD+i)}, s34, {v(KD+i)}")
    for blk in range(3): A(f"ds_write_b128 v8, {v(KD+4*blk,4)} offset:{blk*1024}")
    A(f"ds_write_b32 v23, v22 offset:3072")
    stp(7, "a")
    A(f"s_cmp_lg_u32 s3, 0\ns_cbranch_scc1 {name}_nopoll")
    A("s_mov_b32 s42, 0")
    A.label(f"{name}_sp")
    A(f"s_waitcnt vmcnt(0)\nv_max3_u32 v6, {v(SR)}, {v(SR+1)}, {v(SR+2)}")
    for c in range(3, 13, 2): A(f"v_max3_u32 v6, v6, {v(SR+c)}, {v(SR+c+1)}")
    A(f"v_max_u32 v6, v6, {v(SR+13)}\nv_cmp_eq_u32 vcc, -1, v6")
    A(f"s_add_u32 s42, s42, 1\ns_cmp_gt_u32 s42, 30000\ns_cbranch_scc1 {name}_spd\ns_cmp_eq_u64 vcc, 0\ns_cbranch_scc1 {name}_spd\ns_sleep {SLP}")
    statloads()
    A(f"s_branch {name}_sp")
    A.label(f"{name}_spd")
    A(f"v_pk_add_f32 v[96:97], {v(SR,2)}, {v(SR+2,2)}\nv_mov_b32 v6, v10")
    for c in range(2, 7): A(f"v_pk_add_f32 v[96:97], v[96:97], {v(SR+2*c,2)}")
    A(f"v_mul_f32 v96, {f32(1/896)}, v96\nv_mul_f32 v97, {f32(1/896)}, v97\nv_fma_f32 v97, -v96, v96, v97\nv_max_f32 v97, 0, v97")
    bf16r(A, 97, 97); A(f"v_add_f32 v97, {f32(1e-5)}, v97"); bf16r(A, 97, 97)
    A("v_sqrt_f32 v97, v97\ns_nop 0"); bf16r(A, 97, 97)
    A("v_rcp_f32 v98, v97"); bf16r(A, 96, 96)
    A("v_fma_f32 v99, -v97, v98, 1.0\nv_fma_f32 v97, v99, v98, v98")
    A(f"v_add_u32 v6, {ST2}, v6\nds_write_b64 v6, v[96:97]")
    A.label(f"{name}_nopoll")
    A("s_waitcnt lgkmcnt(0)\ns_barrier")
    stp(3); stp(2, "b")
    vm.q = []
    A(f"s_lshl_b32 s38, s36, 8\ns_add_u32 s38, s38, {ST2}\nv_lshlrev_b32 v6, 5, v4\nv_add_u32 v6, s38, v6")
    for mb in range(2):
        A(f"ds_read_b128 {v(96+mb*8,4)}, v6 offset:{mb*128}\nds_read_b128 {v(100+mb*8,4)}, v6 offset:{mb*128+16}")
    A("s_waitcnt lgkmcnt(0)")
    for mb in range(2):
        for bi in range(2):
            zz = Z2[(mb*2+bi)*4:(mb*2+bi)*4+4]; p = P2[(mb*2+bi)*2:(mb*2+bi)*2+2]
            for i in range(4): A(f"v_sub_f32 {v(zz[i])}, {v(zz[i])}, {v(96+mb*8+2*i)}")
            for h in range(2): A(f"v_cvt_pk_bf16_f32 {v(p[h])}, {v(zz[2*h])}, {v(zz[2*h+1])}")
            for h in range(2): A(f"v_lshlrev_b32 {v(zz[2*h])}, 16, {v(p[h])}\nv_and_b32 {v(zz[2*h+1])}, 0xffff0000, {v(p[h])}")
            for i in range(4): A(f"v_mul_f32 {v(zz[i])}, {v(zz[i])}, {v(96+mb*8+2*i+1)}")
            for h in range(2): A(f"v_cvt_pk_bf16_f32 {v(64+bi*4+mb*2+h)}, {v(zz[2*h])}, {v(zz[2*h+1])}")
    A("s_nop 1")
    for bi in range(2):
        for h in range(2): A(f"v_permlane32_swap_b32 {v(64+bi*4+h)}, {v(64+bi*4+2+h)}")
    A("s_nop 1")
    for bi in range(2):
        for h in range(2): A(f"v_permlane16_swap_b32 {v(64+bi*4+h)}, {v(64+bi*4+2+h)}")
    A(f"s_lshl_b32 s35, s31, 2\ns_add_u32 s35, s35, s37\ns_lshl_b32 s38, s35, 6\ns_lshl_b32 s39, s30, 1\ns_add_u32 s38, s38, s39\ns_add_u32 s38, s38, s36\ns_lshl_b32 s38, s38, 11\ns_add_u32 s38, s38, {WS_Z2F}")
    A("v_lshlrev_b32 v5, 4, v1\ns_waitcnt vmcnt(0)")
    for bi in range(2):
        A(f"buffer_store_dwordx4 {v(64+bi*4,4)}, v5, s[24:27], s38 offen offset:{bi*1024} sc1"); vm.issue("z2")
    stp(3, "b")
    A(f"s_mul_i32 s66, s36, {4*STG}\nv_add_u32 v8, s66, v5\nv_mov_b32 v9, s66")
    for pw in range(4):
        for blk in range(3): A(f"ds_read_b128 {v(32+pw*12+4*blk,4)}, v8 offset:{pw*STG+blk*1024}")
        A(f"ds_read_b32 {v(80+pw)}, v9 offset:{pw*STG+3072}")
    KD = 20
    A("s_waitcnt lgkmcnt(0)\nv_max3_f32 v80, v80, v81, v82\nv_max_f32 v80, v80, v83\nv_rcp_f32 v81, v80")
    for i in range(0, 12, 2):
        A(f"v_pk_add_f32 {v(32+i,2)}, {v(32+i,2)}, {v(44+i,2)}\nv_pk_add_f32 {v(56+i,2)}, {v(56+i,2)}, {v(68+i,2)}")
    for i in range(0, 12, 2): A(f"v_pk_add_f32 {v(32+i,2)}, {v(32+i,2)}, {v(56+i,2)}")
    for i in range(12): A(f"v_mul_f32 {v(KD+i)}, {v(32+i)}, v81")
    A("v_mul_f32 v80, s72, v80\nv_add_f32 v80, v80, v80\ns_nop 0\nv_readfirstlane_b32 s74, v80")
    A(f"v_readlane_b32 s44, {v(KD+4)}, 0\nv_readlane_b32 s45, {v(KD+4)}, 32\nv_readlane_b32 s46, {v(KD+8)}, 0\nv_mov_b32 v9, 0")
    A("s_barrier")
    stp(4, "b")
    srd(A, 20, 14, 2048*4096)
    A("v_lshrrev_b32 v6, 3, v1\ns_lshl_b32 s32, s3, 3\nv_add_u32 v6, s32, v6\nv_and_b32 v7, 7, v1\nv_bfe_u32 v8, v6, 1, 3\nv_xor_b32 v8, v8, v7\nv_lshlrev_b32 v6, 12, v6\nv_lshl_add_u32 v18, v8, 4, v6")
    A(f"s_lshl_b32 s67, s30, 18\ns_lshl_b32 s75, s3, 10\ns_add_u32 s75, s75, {RING2}")
    ROT = int(os.environ.get("ROT", "0"))
    if ROT: A(f"s_lshl_b32 s100, s30, 1\ns_mul_i32 s101, s31, {os.environ.get('ROTC', '5')}\ns_add_u32 s100, s100, s101\ns_and_b32 s100, s100, {ROT-1}\ns_lshl_b32 s100, s100, 7")
    def rot(d, stg, base, sh):
        if not ROT: return f"s_add_u32 {d}, {base}, {(stg*128) << sh}"
        r = f"s_add_u32 {d}, s100, {(stg%ROT)*128}\ns_and_b32 {d}, {d}, {ROT*128-1}\n"
        if stg >= ROT: r += f"s_add_u32 {d}, {d}, {(stg//ROT)*ROT*128}\n"
        if sh: r += f"s_lshl_b32 {d}, {d}, {sh}\n"
        return r + f"s_add_u32 {d}, {d}, {base}"
    def dma2(stg):
        A(f"s_add_u32 m0, s75, {(stg%NR)*8192}\n" + rot("s39", stg, "s67", 0))
        A(f"buffer_load_dwordx4 v18, s[20:23], s39 offen lds"); vm.issue(f"w{stg}")
    ZF = int(os.environ.get("ZF", "12"))
    D2 = int(os.environ.get("D2", "2"))
    grp = []
    for stg in range(NR):
        n0 = len(A.lines)
        if stg == ZF: vm.wait("z2"); setflag("s97"); vm.issue("zf")
        dma2(stg)
        if stg == NR-1 and ZF == NR: vm.wait("z2"); setflag("s97"); vm.issue("zf")
        if stg >= D2: grp.append(A.lines[n0:]); del A.lines[n0:]
    def splice(n0, groups):
        ln = A.lines[n0:]; del A.lines[n0:]
        ok = []; full = True
        for i, l in enumerate(ln):
            if full and "vcc" not in l: ok.append(i)
            if "saveexec" in l or "exec_hi, 0" in l or "exec_lo, 0" in l: full = False
            if "s_mov_b64 exec, s[40:41]" in l or "exec_hi, -1" in l or "exec_lo, -1" in l: full = True
        g = list(groups); step = max(1, len(ok)//max(1, len(g))); at = {ok[min(k*step, len(ok)-1)]: [] for k in range(len(g))}
        for k, x in enumerate(g): at[ok[min(k*step, len(ok)-1)]] += x
        for i, l in enumerate(ln): A.lines += at.get(i, []) + [l]
    NU = int(os.environ.get("NU", "3"))
    U16 = 0; KA = 4608; K16 = KA+1280; K4 = K16+384; K8 = K4+384; W16 = 8192; W4 = W16+5376; W8 = W4+8256
    YA = 0; YC = W4; YD = W8-1024
    assert W8+7296 <= CH
    A(f"s_mul_i32 s66, s36, {CH}\nv_add_u32 v8, s66, v5")
    UF = 32
    n0 = len(A.lines)
    for i in range(4): A(f"v_mov_b32 {v(88+i)}, 0")
    for i in range(28): A(f"v_lshlrev_b32 {v(UF+2*i)}, 16, {v(UR+i)}\nv_and_b32 {v(UF+2*i+1)}, 0xffff0000, {v(UR+i)}")
    splice(n0, grp[:NU]); grp = grp[NU:]
    if ZF == NR+1: vm.wait("z2"); setflag("s97"); vm.issue("zf")
    stp(5, "b")
    UR = 100
    P = lambda k: v(UF+k)
    def S(dst, k, r): return f"v_sub_f32 {v(dst)}, {P(k+r)}, {P(k-r-1)}"
    def prefix():
        for k in range(5, 52): A(f"v_add_f32 {P(k)}, {P(k-1)}, {P(k)}")
    def kzero(off, n16):
        A(f"v_cmp_gt_u32 vcc, {n16}, v1\ns_and_saveexec_b64 s[40:41], vcc\nds_write_b128 v8, v[88:91] offset:{off}\ns_mov_b64 exec, s[40:41]")
    hi = lambda i: '_d16_hi' if i % 2 else ''
    A(f"s_cmp_eq_u32 s65, 1\ns_cbranch_scc1 {name}_b1\ns_cmp_eq_u32 s65, 2\ns_cbranch_scc1 {name}_b2\ns_cmp_eq_u32 s65, 3\ns_cbranch_scc1 {name}_b3")
    n0 = len(A.lines)
    A(f"ds_write_b128 v8, v[88:91] offset:{KA}"); kzero(KA+1024, 16); kzero(U16, 32)
    for i in range(16): A(f"v_cvt_pk_f16_f32 {v(UR+i)}, {v(UF+2*i)}, {v(UF+2*i+1)}")
    A("v_lshl_add_u32 v10, v1, 6, s66")
    for c in range(4): A(f"ds_write_b128 v10, {v(UR+4*c,4)} offset:{U16+512+16*c}")
    A(f"v_writelane_b32 v9, s44, 63\nv_sub_f32 {v(KD+3)}, {v(KD+3)}, v9")
    for i in (0, 2): A(f"v_cvt_pk_f16_f32 {v(KD+i)}, {v(KD+i)}, {v(KD+i+1)}")
    A("v_lshrrev_b32 v10, 1, v4\nv_lshlrev_b32 v10, 7, v10\nv_lshl_add_u32 v10, v3, 3, v10\nv_and_b32 v11, 1, v4\nv_lshl_add_u32 v10, v11, 2, v10")
    A(f"v_sub_u32 v10, 285, v10\nv_lshl_add_u32 v10, v10, 1, s66")
    for cp in range(2):
        for i in range(4): A(f"ds_write_b16{hi(i)} v10, {v(KD+(i//2)*2)} offset:{KA+cp*642+(3-i)*2}")
    splice(n0, grp)
    A(f"s_branch {name}_bd")
    A.label(f"{name}_b1")
    n0 = len(A.lines)
    kzero(K16, 24); prefix()
    A("v_lshl_add_u32 v10, v1, 3, s66")
    for phi in range(16):
        if phi == 15: splice(n0, grp); A("v_cmp_gt_u32 vcc, 40, v1\ns_and_saveexec_b64 s[40:41], vcc")
        o = 100 + (phi % 2)*6
        for lam in range(2):
            k = 16+16*lam+phi
            A(S(o+2+2*lam, k-8, 3)); A(S(o+3+2*lam, k, 4))
        for lam in range(2): A(f"v_cvt_pk_f16_f32 {v(o+lam)}, {v(o+2+2*lam)}, {v(o+3+2*lam)}")
        A(f"ds_write_b64 v10, {v(o,2)} offset:{W16+phi*336}")
    A("s_mov_b64 exec, s[40:41]")
    for i in (8, 10): A(f"v_cvt_pk_f16_f32 {v(KD+i)}, {v(KD+i)}, {v(KD+i+1)}")
    A(f"v_lshl_add_u32 v10, v4, 6, v3\nv_sub_u32 v10, {111+128}, v10\nv_lshl_add_u32 v10, v10, 1, s66")
    A("v_cmp_gt_u32 vcc, 33, v1\ns_and_saveexec_b64 s[40:41], vcc")
    A(f"ds_write_b16 v10, {v(KD+8)} offset:{K16-256+96}\ns_mov_b32 exec_hi, 0")
    for i in range(1, 4): A(f"ds_write_b16{hi(i)} v10, {v(KD+8+(i//2)*2)} offset:{K16-256+(3-i)*32}")
    A(f"s_mov_b64 exec, s[40:41]\ns_branch {name}_bd")
    A.label(f"{name}_b2")
    n0 = len(A.lines)
    kzero(K4, 24)
    A("v_lshl_add_u32 v10, v1, 5, s66")
    for phi in range(4):
        o = 100 + (phi % 2)*8
        for lam in range(8):
            k = 16+4*lam+phi
            A(f"v_add_f32 {v(116+lam)}, {P(k-1)}, {P(k)}")
        for lam in range(8):
            k = 16+4*lam+phi
            A(f"v_add_f32 {v(116+lam)}, {v(116+lam)}, {P(k+1)}")
        for lam in range(8):
            k = 16+4*lam+phi
            A(f"v_cvt_pk_f16_f32 {v(o+lam)}, {P(k-2)}, {v(116+lam)}")
        A(f"ds_write_b128 v10, {v(o,4)} offset:{W4+phi*2064}\nds_write_b128 v10, {v(o+4,4)} offset:{W4+phi*2064+16}")
    splice(n0, grp)
    A(f"v_writelane_b32 v9, s45, 31\nv_sub_f32 {v(KD+7)}, {v(KD+7)}, v9")
    for i in (4, 6): A(f"v_cvt_pk_f16_f32 {v(KD+i)}, {v(KD+i)}, {v(KD+i+1)}")
    A("v_and_b32 v11, 1, v4\nv_lshlrev_b32 v11, 6, v11\nv_lshl_add_u32 v10, v3, 2, v11\nv_sub_u32 v10, 156, v10\nv_lshl_add_u32 v10, v10, 1, s66\ns_mov_b32 exec_hi, 0")
    for i in range(4): A(f"ds_write_b16{hi(i)} v10, {v(KD+4+(i//2)*2)} offset:{K4+(3-i)*2}")
    A(f"s_mov_b32 exec_hi, -1\ns_branch {name}_bd")
    A.label(f"{name}_b3")
    n0 = len(A.lines)
    kzero(K8, 24); prefix()
    for phi in range(8):
        if phi == 7: splice(n0, grp); A("v_cmp_gt_u32 vcc, 56, v1\ns_and_saveexec_b64 s[40:41], vcc")
        o = 100 + (phi % 2)*12
        for lam in range(4):
            k = 16+8*lam+phi
            A(S(o+4+lam, k-4, 1)); A(S(o+8+lam, k, 2))
        for lam in range(4): A(f"v_cvt_pk_f16_f32 {v(o+lam)}, {v(o+4+lam)}, {v(o+8+lam)}")
        A(f"ds_write_b128 v8, {v(o,4)} offset:{W8+phi*912}")
    A("s_mov_b64 exec, s[40:41]")
    A(f"v_writelane_b32 v9, s46, 63\nv_sub_f32 {v(KD+7)}, {v(KD+7)}, v9")
    for i in (4, 6): A(f"v_cvt_pk_f16_f32 {v(KD+i)}, {v(KD+i)}, {v(KD+i+1)}")
    A("v_and_b32 v11, 1, v4\nv_lshlrev_b32 v11, 6, v11\nv_lshl_add_u32 v11, v3, 1, v11\nv_sub_u32 v11, 126, v11\nv_lshl_add_u32 v11, v11, 1, s66\ns_mov_b32 exec_lo, 0")
    for i in range(4): A(f"ds_write_b16{hi(i)} v11, {v(KD+4+(i//2)*2)} offset:{K8+66-64*(i//2)-2*(i%2)}")
    A("s_mov_b32 exec_lo, -1")
    A.label(f"{name}_bd")
    stp(6, "b")
    if ZF > NR+1: vm.wait("z2"); setflag("s97")
    stp(7, "b")
    EFL = int(os.environ.get("EFL", "0"))
    EFT = "s_lshl_b32 s38, s30, 2\ns_sub_u32 s38, s97, s38\nv_lshlrev_b32 v6, 2, v1\nv_and_b32 v6, 0x7c, v6\nbuffer_load_dword v0, v6, s[24:27], s38 offen sc1"
    if EFL: A(EFT)
    A("s_waitcnt lgkmcnt(0)\ns_barrier")
    stp(4); stp(2, "c")
    def tfrags(dst, areg, off0, n, step):
        for d in range(n):
            o = (off0 - step*d)//4
            A(f"ds_read2_b32 {v(dst+4*d,2)}, {v(areg)} offset0:{o} offset1:{o+1}\nds_read2_b32 {v(dst+4*d+2,2)}, {v(areg)} offset0:{o+2} offset1:{o+3}")
    def mfj(ac, first, aop, bop):
        return f"v_mfma_f32_16x16x32_f16 {v(ac,4)}, {aop}, {bop}, {'0' if first else v(ac,4)}"
    JPS = int(os.environ.get("JPS", "2"))
    TB = 160; RG = 236
    ACC = 20; FB = 52
    ZS = [84, 92, 100, 108, 116, 124, 144, 152][:ZD]
    A(f"v_lshlrev_b32 v11, 2, v4\nv_sub_u32 v11, v11, v3\nv_lshlrev_b32 v11, 2, v11\nv_add_u32 v11, {K16+60}, v11\nv_add_u32 v11, s66, v11")
    A("v_lshlrev_b32 v12, 6, v3\nv_lshl_add_u32 v12, v4, 4, v12\nv_add_u32 v12, s66, v12")
    A("v_mul_u32_u24 v13, 336, v3\nv_lshl_add_u32 v13, v4, 4, v13\nv_add_u32 v13, s66, v13")
    A(f"v_lshrrev_b32 v6, 1, v3\nv_xor_b32 v6, v6, v4\ns_lshl_b32 s38, s36, 2\nv_xor_b32 v6, s38, v6\nv_lshlrev_b32 v7, 7, v3\nv_lshl_add_u32 v19, v6, 4, v7\nv_add_u32 v19, {RING2}, v19")
    A(f"s_lshl_b32 s34, s35, 17\ns_lshl_b32 s39, s36, 11\ns_add_u32 s34, s34, s39\ns_add_u32 s34, s34, {WS_Z2F}")
    A(f"s_lshl_b32 s33, s64, 12\ns_add_u32 s33, s33, {WS_AT}\ns_add_u32 s68, s10, s33\ns_addc_u32 s69, s11, 0")
    A("s_lshl_b32 s38, s30, 7\ns_lshl_b32 s39, s36, 6\ns_add_u32 s38, s38, s39\nv_lshlrev_b32 v6, 1, v3\nv_add_u32 v6, s38, v6")
    for t in range(2): A(f"global_load_ushort {v(16+t)}, v6, s[60:61] offset:{32*t}")
    A("s_lshl_b32 s33, s65, 11\nv_add_u32 v9, s33, v12\nv_add_u32 v135, 65536, v19")
    WR = 160
    A(f"s_mul_i32 s47, s31, {4*28}\ns_lshl_b32 s39, s3, 2\ns_add_u32 s47, s47, s39\ns_lshl_b32 s47, s47, 10\ns_add_u32 s47, s47, {WS_WOF}")
    def zl(stg):
        A(f"s_add_u32 s38, s34, {stg*4096}")
        for bi in range(2):
            A(f"buffer_load_dwordx4 {v(ZS[stg%ZD]+4*bi,4)}, v5, s[24:27], s38 offen offset:{bi*1024}"); vm.issue(f"z{stg}")
    GAP = int(os.environ.get("GAP", "2"))
    def zl1(stg, bi):
        A(rot("s38", stg, "s34", 5) + f"\nbuffer_load_dwordx4 {v(ZS[stg%ZD]+4*bi,4)}, v5, s[24:27], s38 offen offset:{bi*1024}"); vm.issue(f"z{stg}")
    def frags2(stg):
        b = FB + (stg % 2)*16
        for tb in range(4): A(f"ds_read_b128 {v(b+tb*4,4)}, {'v19' if stg%NR < 8 else 'v135'} offset:{(stg%NR%8)*8192+tb*2048}")
    EF = int(os.environ.get("EF", "8"))
    if EF >= 0 and not EFL: A(EFT)
    A(f"s_cmp_eq_u32 s65, 1\ns_cbranch_scc1 {name}_c1\ns_cmp_eq_u32 s65, 2\ns_cbranch_scc1 {name}_c2\ns_cmp_eq_u32 s65, 3\ns_cbranch_scc1 {name}_c3")
    NBAT = (54-PRE+JPS-1)//JPS
    PG = int(os.environ.get("PG", "16"))
    def fladdr():
        A(f"s_lshl_b32 s38, s30, 2\ns_sub_u32 s38, s97, s38\nv_min_u32 v6, 59, v1\nv_lshlrev_b32 v6, 2, v6\nv_mov_b32 v7, s38\nv_mov_b32 v0, {WS_FL+31744-128}\nv_cmp_gt_u32 vcc, 32, v1\nv_cndmask_b32 v7, v0, v7, vcc\nv_add_u32 v6, v6, v7")
    WL = int(os.environ.get("WL", "16"))
    assert NBAT+3 < 32-WL//2
    FLS = int(os.environ.get("FLS", "3"))
    FLL = "buffer_load_dword v0, v6, s[24:27], 0 offen sc1"
    for role in range(4):
        if role: A.label(f"{name}_c{role}")
        jobs = []; wr = []
        if role < 2:
            TD = TB; TT = TB+36; T16 = TB+40; AC = TB+60
            A("v_and_b32 v10, 1, v3\nv_mul_u32_u24 v10, 642, v10\nv_lshlrev_b32 v14, 3, v4\nv_sub_u32 v14, v14, v3\nv_lshl_add_u32 v10, v14, 1, v10")
            A(f"v_add_u32 v10, {KA+32}, v10\nv_add_u32 v10, s66, v10")
            tfrags(TD, 10, 512, 9, 64)
            tfrags(T16, 11, 256, 5 if role else 1, 64)
            A("v_mov_b32 v10, s46\nv_cvt_pk_f16_f32 v10, v10, v10\nv_sub_u32 v14, 5, v14\nv_and_b32 v15, 0xffff, v10\nv_and_b32 v20, 0xffff0000, v10")
            for p in range(8): A(f"v_cmp_eq_u32 {s(80+2*p,2)}, {p}, v14")
            for p in range(4): A(f"v_cndmask_b32 {v(TT+p)}, 0, v15, {s(80+4*p,2)}")
            for p in range(4): A(f"v_cndmask_b32 {v(TT+p)}, {v(TT+p)}, v20, {s(82+4*p,2)}")
            A("v_lshlrev_b32 v10, 5, v3\nv_lshl_add_u32 v10, v4, 4, v10\nv_add_u32 v10, s66, v10")
            for nb in range(4*role, 4*role+4):
                ac = AC+4*(nb % 4)
                for d in range(9):
                    dp = 1+2*d
                    if nb == 0 and dp > 15: continue
                    jobs.append((10, U16+512+512*nb-32*dp, lambda f, ac=ac, d=d: mfj(ac, d == 0, v(TD+4*d,4), v(f,4))))
                if nb >= 3: jobs.append((10, U16+512+512*nb-2048, lambda f, ac=ac: mfj(ac, False, v(TT,4), v(f,4))))
                for d in range(5):
                    if nb-3-d >= 0: jobs.append((13, W16+64*(nb-3-d), lambda f, ac=ac, d=d: mfj(ac, False, v(f,4), v(T16+4*d,4))))
                wr.append(f"ds_write_b128 v12, {v(ac,4)} offset:{YA+1024*nb}")
        elif role == 2:
            AC = TB+20
            tfrags(TB, 11, 256+384, 5, 64)
            A("v_and_b32 v10, 3, v3\nv_mul_u32_u24 v10, 2064, v10\nv_lshrrev_b32 v14, 2, v3\nv_lshl_add_u32 v10, v14, 6, v10\nv_lshl_add_u32 v10, v4, 4, v10\nv_add_u32 v10, s66, v10")
            for t in range(8):
                for d in range(5):
                    if 4*t-d >= 0: jobs.append((10, W4+64*(4*t-d), lambda f, ac=AC+4*t, d=d: mfj(ac, d == 0, v(f,4), v(TB+4*d,4))))
                wr.append(f"ds_write_b128 v8, {v(AC+4*t,4)} offset:{YC+1024*t}")
        else:
            AC = TB+20
            A("v_add_u32 v14, 768, v11")
            tfrags(TB, 14, 256, 5, 64)
            A("v_and_b32 v10, 7, v3\nv_mul_u32_u24 v10, 912, v10\nv_lshrrev_b32 v14, 3, v3\nv_lshl_add_u32 v10, v14, 6, v10\nv_lshl_add_u32 v10, v4, 4, v10\nv_add_u32 v10, s66, v10")
            A("v_lshrrev_b32 v14, 1, v4\nv_lshlrev_b32 v14, 9, v14\nv_lshl_add_u32 v14, v3, 5, v14\nv_and_b32 v15, 1, v4\nv_lshl_add_u32 v14, v15, 4, v14\nv_add_u32 v14, s66, v14")
            for t in range(1, 8):
                for d in range(5):
                    if 2*t-2-d >= 0: jobs.append((10, W8+64*(2*t-2-d), lambda f, ac=AC+4*(t-1), d=d: mfj(ac, d == 0, v(f,4), v(TB+4*d,4))))
                wr.append(f"ds_write_b128 v14, {v(AC+4*(t-1),4)} offset:{YD+1024*t}")
        pre = jobs[:PRE]; jobs = jobs[PRE:]
        PRELINES = True
        def zpoll():
            stp(3, "c")
            L = A.newlabel("ef")
            if EF >= 0: A(f"s_waitcnt vmcnt(0)\nv_cmp_eq_u32 vcc, 0, v0\ns_and_b32 s38, vcc_lo, {hex((1<<PG)-1)}\ns_cbranch_scc0 {L}")
            A("s_lshl_b32 s38, s30, 2\ns_sub_u32 s38, s97, s38")
            pollflags(PG)
            A.label(L)
            if PG == 32: A(f"s_mov_b32 s38, {WS_FL+31744}"); pollflags(28)
            stp(4, "c")
            vm.q = []
        zq = [(stg, bi) for stg in range(ZD) for bi in range(2)]
        ZE = int(os.environ.get("ZE", "0"))
        if ZE:
            zpoll()
            for _ in range(ZE): zl1(*zq.pop(0))
        lg.q = []; A("s_waitcnt lgkmcnt(0)")
        for i, jb in enumerate(pre): A(f"ds_read_b128 {v(20+4*i,4)}, {v(jb[0])} offset:{jb[1]}"); lg.issue(f"j{i}")
        for i, jb in enumerate(pre):
            if i == EF and not ZE: zpoll()
            lg.wait(f"j{i}"); A(jb[2](20+4*i))
            if 0 <= EF <= i:
                for _ in range(2):
                    if zq: zl1(*zq.pop(0))
        if EF < 0 or EF >= len(pre): zpoll()
        for q_ in zq: zl1(*q_)
        A("s_barrier")
        stp(5); stp(5, "c")
        def cread(bt):
            for k, jb in enumerate(jobs[bt*JPS:(bt+1)*JPS]):
                A(f"ds_read_b128 {v(RG+((bt%2)*JPS+k)*4,4)}, {v(jb[0])} offset:{jb[1]}")
        frags2(0); cread(0)
        A(f"v_mov_b32 v15, {f32(GC1)}")
        Y = TB
        for stg in range(32):
            if stg+1 >= NR and stg+1 < 32: vm.wait(f"w{stg+1}")
            vm.wait(f"z{stg}")
            if PG < 32 and stg == PG-ZD+1:
                vm.wait("fl")
                L = A.newlabel("fs")
                A(f"v_cmp_eq_u32 vcc, 0, v0\ns_cmp_eq_u64 vcc, 0\ns_cbranch_scc1 {L}")
                fladdr(); A("v_mov_b32 v0, 0"); check(0, FLL)
                A.label(L)
            A("s_waitcnt lgkmcnt(0)")
            if stg+1 < 32: A("s_barrier")
            b = FB + (stg % 2)*16; zb = ZS[stg % ZD]
            mf = []
            for tb in range(4):
                for bi in range(2):
                    ac = v(ACC+(tb*2+bi)*4,4)
                    mf.append(f"v_mfma_f32_16x16x32_bf16 {ac}, {v(zb+bi*4,4)}, {v(b+tb*4,4)}, {'0' if stg == 0 else ac}")
            for k, jb in enumerate(jobs[stg*JPS:(stg+1)*JPS]): mf.append(jb[2](RG+((stg%2)*JPS+k)*4))
            fill = []
            def lds_part():
                if stg+1 < 32: frags2(stg+1)
                cread(stg+1)
                if stg == NBAT:
                    for w_ in wr: A(w_)
                if stg == NBAT+1:
                    for t in range(2):
                        for k, YY in enumerate((YA, YC) if (role == 0 and t == 0) else (YA, YC, YD)): A(f"ds_read_b128 {v(Y+(t*4+k)*4,4)}, v9 offset:{YY+1024*t}")
            fill.append(lds_part)
            if stg+NR < 32: fill.append(lambda: dma2(stg+NR))
            zs = stg+ZD-1
            if stg >= 1 and zs < 32:
                fill.append(lambda: zl1(zs, 0)); fill.append(lambda: zl1(zs, 1))
            if PG < 32 and stg == FLS:
                def flr(): fladdr(); A(FLL); vm.issue("fl")
                fill.append(flr)
            if 32-WL//2 <= stg < 32:
                for q_ in range(2):
                    n_ = (stg-(32-WL//2))*2+q_; j = n_//4; ks = n_ % 4
                    def wl(j=j, ks=ks):
                        A(f"s_add_u32 s38, s47, {j*28*1024}\nbuffer_load_dwordx4 {v(WR+ks*16+j*4,4)}, v5, s[24:27], s38 offen offset:{ks*1024}"); vm.issue("W")
                    fill.append(wl)
            if stg == 8: stp(7, "c")
            if 2 <= stg < 18 and stg % 2 == 0:
                pr = P1[(stg-2)//2]
                def g1(pr=pr):
                    A(f"v_lshlrev_b32 v6, 16, {v(pr)}\nv_and_b32 v7, 0xffff0000, {v(pr)}\nv_mul_f32 v132, v6, v6\nv_mul_f32 v133, v7, v7")
                    A(f"v_fmaak_f32 v132, v132, v15, {f32(GC0)}\nv_fmaak_f32 v133, v133, v15, {f32(GC0)}\nv_mul_f32 v132, v132, v6\nv_mul_f32 v133, v133, v7\nv_exp_f32 v132, v132\nv_exp_f32 v133, v133")
                def g2(pr=pr):
                    A(f"v_add_f32 v132, 1.0, v132\nv_add_f32 v133, 1.0, v133\nv_rcp_f32 v132, v132\nv_rcp_f32 v133, v133\ns_nop 0\nv_mul_f32 v6, v6, v132\nv_mul_f32 v7, v7, v133\nv_cvt_pk_bf16_f32 {v(pr)}, v6, v7")
                fill.append(g1); fill.append(g2)
            for i, m in enumerate(mf):
                A(m)
                if i % GAP == 0 and fill: fill.pop(0)()
            for f_ in fill: f_()
            if stg in (NBAT+2, NBAT+3):
                t = stg-NBAT-2
                for h in range(2):
                    y = Y+t*16+2*h; x = XE+t*2+h; tt = TB+32+4*(t*2+h)
                    if not (role == 0 and t == 0): A(f"v_pk_add_f32 {v(y+4,2)}, {v(y+4,2)}, {v(y+8,2)}")
                    A(f"v_pk_add_f32 {v(y,2)}, {v(y,2)}, {v(y+4,2)}")
                    A(f"v_mul_f32 {v(y)}, s74, {v(y)}\nv_mul_f32 {v(y+1)}, s74, {v(y+1)}")
                    A(f"v_lshlrev_b32 {v(tt)}, 16, {v(x)}\nv_and_b32 {v(tt+1)}, 0xffff0000, {v(x)}\nv_mul_f32 {v(tt)}, s73, {v(tt)}\nv_mul_f32 {v(tt+1)}, s73, {v(tt+1)}")
                    A(f"v_cvt_pk_bf16_f32 {v(x)}, {v(tt)}, {v(tt+1)}\nv_cvt_pk_bf16_f32 {v(tt+2)}, {v(y)}, {v(y+1)}")
                    A(f"v_lshlrev_b32 {v(tt)}, 16, {v(x)}\nv_and_b32 {v(tt+1)}, 0xffff0000, {v(x)}\nv_lshlrev_b32 {v(y)}, 16, {v(tt+2)}\nv_and_b32 {v(y+1)}, 0xffff0000, {v(tt+2)}")
                    A(f"v_pk_add_f32 {v(tt,2)}, {v(tt,2)}, {v(y,2)}\nv_cvt_pk_bf16_f32 {v(x)}, {v(tt)}, {v(tt+1)}")
                A(f"buffer_store_dwordx2 {v(XE+2*t,2)}, v2, s[68:71], 0 offen offset:{512*t} sc1"); vm.issue("at")
            if stg == NBAT+8 or (stg == 31 and NBAT+8 > 31): vm.wait("at"); setflag("s98")
        if role < 3: A(f"s_branch {name}_cd")
    A.label(f"{name}_cd")
    stp(6); stp(2, "d")
    A(f"s_lshl_b32 s38, s3, 12\nv_add_u32 v6, s38, v5\ns_xor_b32 s38, s3, 4\ns_lshl_b32 s38, s38, 12\nv_add_u32 v7, s38, v5")
    A(f"v_lshlrev_b32 v16, 16, v16\nv_lshlrev_b32 v17, 16, v17\ns_nop 4\ns_cmp_eq_u32 s36, 0\ns_cbranch_scc1 {name}_x0")
    for i in range(4): A(f"ds_write_b128 v6, {v(ACC+4*i,4)} offset:{1024*i}")
    for i in range(16): A(f"v_mov_b32 {v(ACC+i)}, {v(ACC+16+i)}")
    A(f"s_branch {name}_x1")
    A.label(f"{name}_x0")
    for i in range(4): A(f"ds_write_b128 v6, {v(ACC+16+4*i,4)} offset:{1024*i}")
    A.label(f"{name}_x1")
    A("s_waitcnt lgkmcnt(0)\ns_barrier")
    for i in range(4): A(f"ds_read_b128 {v(ACC+16+4*i,4)}, v7 offset:{1024*i}")
    A(f"s_lshl_b32 s39, s30, 2\ns_lshl_b32 s38, s36, 1\ns_add_u32 s39, s39, s38\ns_mul_i32 s39, s39, 28\ns_add_u32 s38, s39, s35\ns_lshl_b32 s38, s38, 10\ns_add_u32 s38, s38, {WS_HF}\ns_add_u32 s33, s38, {28*1024}")
    A("s_waitcnt lgkmcnt(0)")
    for i in range(8): A(f"v_pk_add_f32 {v(ACC+2*i,2)}, {v(ACC+2*i,2)}, {v(ACC+16+2*i,2)}")
    for tb in range(2):
        for bi in range(2):
            ac = ACC+(tb*2+bi)*4; zz = P1[(tb*2+bi)*2]; t = FB+(tb*2+bi)*6
            for h in range(2): A(f"v_cvt_pk_bf16_f32 {v(t+h)}, {v(ac+2*h)}, {v(ac+2*h+1)}")
            for h in range(2): A(f"v_lshlrev_b32 {v(ac+2*h)}, 16, {v(t+h)}\nv_and_b32 {v(ac+2*h+1)}, 0xffff0000, {v(t+h)}")
            for i in range(4): A(f"v_add_f32 {v(ac+i)}, {v(ac+i)}, {v(16+tb)}")
            for h in range(2): A(f"v_cvt_pk_bf16_f32 {v(t+h)}, {v(ac+2*h)}, {v(ac+2*h+1)}")
            for h in range(2): A(f"v_lshlrev_b32 {v(ac+2*h)}, 16, {v(t+h)}\nv_and_b32 {v(ac+2*h+1)}, 0xffff0000, {v(t+h)}")
            for h in range(2): A(f"v_lshlrev_b32 {v(t+2+2*h)}, 16, {v(zz+h)}\nv_and_b32 {v(t+3+2*h)}, 0xffff0000, {v(zz+h)}")
            for i in range(4): A(f"v_mul_f32 {v(ac+i)}, {v(ac+i)}, {v(t+2+i)}")
            for h in range(2): A(f"v_cvt_pk_bf16_f32 {v(zz+h)}, {v(ac+2*h)}, {v(ac+2*h+1)}")
        A(f"buffer_store_dwordx4 {v(P1[tb*4],4)}, v5, s[24:27], {'s33' if tb else 's38'} offen sc1")
    HR = 52; RED = 8192
    acc3 = lambda tb, j: 20+(tb*4+j)*4 if tb < 2 else 224+((tb-2)*4+j)*4
    A(f"s_lshr_b32 s32, s3, 1\ns_lshl_b32 s38, s30, 2\ns_add_u32 s38, s38, s32\ns_mul_i32 s67, s38, {16*896}\ns_lshl_b32 s38, s31, 7\ns_add_u32 s67, s67, s38\ns_and_b32 s38, s3, 1\ns_lshl_b32 s38, s38, 4\ns_add_u32 s67, s67, s38")
    A("v_mul_u32_u24 v18, 896, v3\nv_lshl_add_u32 v18, v4, 5, v18")
    A("buffer_load_dwordx4 v[12:15], v18, s[16:19], s67 offen")
    A(f"s_cmp_eq_u32 s3, 7\ns_cbranch_scc1 {name}_w7")
    A("s_lshl_b32 s39, s3, 2\ns_waitcnt vmcnt(1)")
    stp(3, "d")
    setflag("s96")
    for n_ in range(WL, 16):
        j = n_//4; ks = n_ % 4
        A(f"s_add_u32 s38, s47, {j*28*1024}\nbuffer_load_dwordx4 {v(WR+ks*16+j*4,4)}, v5, s[24:27], s38 offen offset:{ks*1024}")
    A("s_barrier")
    A(f"s_lshl_b32 s38, s30, 8\ns_lshl_b32 s33, s3, 5\ns_add_u32 s38, s38, s33\ns_add_u32 s38, s38, {WS_FL}")
    pollflags(8)
    stp(7); stp(5, "d")
    vm.q = []
    A(f"s_mul_i32 s38, s30, {4*28}\ns_add_u32 s38, s38, s39\ns_lshl_b32 s38, s38, 10\ns_add_u32 s38, s38, {WS_HF}")
    for tb in range(1, 4): A(f"s_add_u32 s{32+tb}, s38, {tb*28*1024}")
    for ks in range(4):
        for tb in range(4):
            A(f"buffer_load_dwordx4 {v(HR+ks*16+tb*4,4)}, v5, s[24:27], {'s38' if tb == 0 else 's%d' % (32+tb)} offen offset:{ks*1024}"); vm.issue(f"k{ks}{tb}")
    for ks in range(4):
        for tb in range(4):
            vm.wait(f"k{ks}{tb}")
            for j in range(4):
                ac = v(acc3(tb, j),4)
                A(f"v_mfma_f32_16x16x32_bf16 {ac}, {v(WR+ks*16+j*4,4)}, {v(HR+ks*16+tb*4,4)}, {'0' if ks == 0 else ac}")
    stp(6, "d")
    A(f"s_lshl_b32 s38, s3, 14\ns_add_u32 s38, s38, {RED}\nv_add_u32 v7, s38, v5\ns_nop 7")
    for tb in range(4):
        for j in range(4): A(f"ds_write_b128 v7, {v(acc3(tb, j),4)} offset:{(tb*4+j)*1024}")
    A(f"s_branch {name}_w7d")
    A.label(f"{name}_w7")
    A("s_waitcnt vmcnt(1)")
    setflag("s96")
    A("s_barrier")
    A(f"s_lshl_b32 s38, s31, 10\ns_lshr_b32 s33, s30, 3\ns_lshl_b32 s33, s33, 8\ns_add_u32 s38, s38, s33\ns_add_u32 s38, s38, {WS_FL+16384}")
    pollflags(64)
    A(f"v_lshrrev_b32 v6, 3, v1\nv_and_b32 v7, 7, v1\nv_lshlrev_b32 v6, 12, v6\nv_lshl_add_u32 v6, v7, 4, v6")
    A(f"s_lshl_b32 s38, s31, 18\ns_lshl_b32 s33, s30, 7\ns_add_u32 s38, s38, s33\ns_add_u32 s38, s38, {WS_AT}")
    for i in range(8):
        A(f"s_mov_b32 m0, {i*1024}\ns_nop 0\nbuffer_load_dwordx4 v6, s[24:27], s38 offen lds\ns_add_u32 s38, s38, {8*4096}")
    A.label(f"{name}_w7d")
    A("v_bfe_u32 v6, v1, 2, 2\nv_lshl_add_u32 v6, v4, 4, v6\nv_lshlrev_b32 v6, 7, v6\nv_and_b32 v7, 3, v1\nv_lshl_add_u32 v6, v7, 3, v6\ns_lshl_b32 s38, s32, 5\ns_and_b32 s33, s3, 1\ns_lshl_b32 s33, s33, 10\ns_add_u32 s38, s38, s33\nv_add_u32 v6, s38, v6")
    srd(A, 20, 62, 2048*896)
    A(f"s_lshl_b32 s38, s3, 11\ns_add_u32 s38, s38, {RED}\nv_add_u32 v7, s38, v5\nv_add_u32 v8, 65536, v7")
    A("s_waitcnt vmcnt(0) lgkmcnt(0)\ns_barrier")
    stp(7, "d")
    for sw in range(7):
        for jj in range(2): A(f"ds_read_b128 {v(52+sw*8+jj*4,4)}, {'v7' if sw < 4 else 'v8'} offset:{(sw%4)*16384+jj*1024}")
    for jj in range(2): A(f"ds_read_b64_tr_b16 {v(112+2*jj,2)}, v6 offset:{jj*512}")
    for i in range(4): A(f"v_lshlrev_b32 {v(20+2*i)}, 16, {v(12+i)}\nv_and_b32 {v(21+2*i)}, 0xffff0000, {v(12+i)}")
    A("s_waitcnt lgkmcnt(0)")
    for i in range(4):
        A(f"v_lshlrev_b32 {v(28+2*i)}, 16, {v(112+i)}\nv_and_b32 {v(29+2*i)}, 0xffff0000, {v(112+i)}\nv_pk_add_f32 {v(20+2*i,2)}, {v(20+2*i,2)}, {v(28+2*i,2)}")
        A(f"v_cvt_pk_bf16_f32 {v(12+i)}, {v(20+2*i)}, {v(21+2*i)}\nv_lshlrev_b32 {v(20+2*i)}, 16, {v(12+i)}\nv_and_b32 {v(21+2*i)}, 0xffff0000, {v(12+i)}")
        p = lambda sw: v(52+sw*8+2*i,2)
        A(f"v_pk_add_f32 {p(0)}, {p(0)}, {p(1)}\nv_pk_add_f32 {p(2)}, {p(2)}, {p(3)}\nv_pk_add_f32 {p(4)}, {p(4)}, {p(5)}\nv_pk_add_f32 {p(0)}, {p(0)}, {p(2)}\nv_pk_add_f32 {p(4)}, {p(4)}, {p(6)}\nv_pk_add_f32 {p(0)}, {p(0)}, {p(4)}")
        A(f"v_cvt_pk_bf16_f32 {v(12+i)}, {v(52+2*i)}, {v(53+2*i)}\nv_lshlrev_b32 {v(52+2*i)}, 16, {v(12+i)}\nv_and_b32 {v(53+2*i)}, 0xffff0000, {v(12+i)}")
        A(f"v_pk_add_f32 {v(52+2*i,2)}, {v(52+2*i,2)}, {v(20+2*i,2)}\nv_cvt_pk_bf16_f32 {v(12+i)}, {v(52+2*i)}, {v(53+2*i)}")
    A("buffer_store_dwordx4 v[12:15], v18, s[20:23], s67 offen")
    if STAMPS: A("s_waitcnt vmcnt(0)"); stp(1)
    A("s_endpgm")
    A.label(f"{name}_prep")
    srd(A, 16, 12, 896*896)
    srd(A, 24, 10, WS_END)
    srd(A, 20, 14, 2048*4096)
    A(f"s_sub_u32 s30, s2, {NG}\ns_mul_i32 s31, s30, {32*896}\nv_lshlrev_b32 v3, 4, v0")
    A(f"v_mov_b32 v8, 0\nv_mov_b32 v9, 0\nv_mov_b32 v10, 0\nv_mov_b32 v11, 0\nv_mov_b32 v12, -1\nv_mov_b32 v13, -1\nv_mov_b32 v14, -1\nv_mov_b32 v15, -1")
    A(f"s_lshl_b32 s32, s30, 10\ns_add_u32 s32, s32, {WS_FL-4096}\ns_mul_i32 s33, s30, 3584\ns_add_u32 s33, s33, {WS_STAT}")
    A(f"s_cmp_lg_u32 s3, 4\ns_cbranch_scc1 {name}_cl1\nbuffer_store_dwordx4 v[8:11], v3, s[24:27], s32 offen sc1")
    A.label(f"{name}_cl1")
    A(f"s_cmp_ge_u32 s3, 4\ns_cbranch_scc1 {name}_cl2\nv_cmp_gt_u32 vcc, 224, v0\ns_and_saveexec_b64 s[40:41], vcc\nbuffer_store_dwordx4 v[12:15], v3, s[24:27], s33 offen sc1\ns_mov_b64 exec, s[40:41]")
    A.label(f"{name}_cl2")
    A(f"s_waitcnt vmcnt(0)\ns_barrier\ns_cmp_lg_u32 s3, 0\ns_cbranch_scc1 {name}_cl3")
    A("v_mov_b32 v6, s30\nv_mov_b32 v7, 1\ns_mov_b64 exec, 1\nglobal_store_byte v6, v7, s[8:9] sc1\ns_mov_b64 exec, -1")
    A.label(f"{name}_cl3")
    stp(2, "p")
    WP0 = int(os.environ.get("WP0", "12"))
    if WP0 < 28:
        srd(A, 80, 6, 448*3584)
        A("s_and_b32 s32, s30, 1\ns_lshl_b32 s32, s32, 2\ns_lshr_b32 s33, s30, 3\ns_add_u32 s32, s32, s33\ns_cmp_eq_u32 s33, 3\ns_cselect_b32 s32, 3, s32\ns_lshl_b32 s32, s32, 8")
        A(f"s_add_u32 s32, s32, {WP0*16*3584}\nv_lshrrev_b32 v4, 5, v0\nv_mul_u32_u24 v4, 3584, v4\nv_bfe_u32 v5, v0, 4, 1\nv_mul_u32_u24 v5, 1792, v5\nv_and_b32 v6, 15, v0\nv_lshl_add_u32 v4, v6, 4, v4\nv_add_u32 v4, v4, v5")
        for n in range(WP0, 28):
            A(f"buffer_load_dwordx4 {v(24+4*n,4)}, v4, s[80:83], s32 offen\ns_add_u32 s32, s32, {16*3584}")
    A(f"s_cmp_ge_u32 s30, 28\ns_cbranch_scc1 {name}_pf")
    for i in range(4):
        if i == 3: A("v_cmp_gt_u32 vcc, 256, v0\ns_and_saveexec_b64 s[40:41], vcc")
        A(f"s_add_u32 s32, s31, {i*8192}\nbuffer_load_dwordx4 {v(8+4*i,4)}, v3, s[16:19], s32 offen")
    A("s_waitcnt vmcnt(0)\nds_write_b128 v3, v[20:23] offset:24576\ns_mov_b64 exec, s[40:41]")
    for i in range(3): A(f"ds_write_b128 v3, {v(8+4*i,4)} offset:{i*8192}")
    A("s_waitcnt lgkmcnt(0)\ns_barrier")
    A("v_lshrrev_b32 v4, 2, v1\nv_mul_u32_u24 v4, 896, v4\nv_and_b32 v5, 3, v1\nv_lshl_add_u32 v4, v5, 5, v4\ns_lshr_b32 s32, s3, 2\ns_lshl_b32 s32, s32, 7\ns_and_b32 s33, s3, 3\ns_lshl_b32 s33, s33, 3\ns_add_u32 s32, s32, s33\nv_add_u32 v4, s32, v4")
    A(f"v_lshlrev_b32 v5, 4, v1\ns_mul_i32 s33, s3, {28*1024}\ns_lshl_b32 s34, s30, 10\ns_add_u32 s33, s33, s34\ns_add_u32 s33, s33, {WS_WOF}")
    for i in range(4):
        if i == 3: A(f"s_cmp_ge_u32 s3, 4\ns_cbranch_scc1 {name}_pf")
        A(f"ds_read_b64_tr_b16 {v(8+4*i,2)}, v4 offset:{i*256}\nds_read_b64_tr_b16 {v(10+4*i,2)}, v4 offset:{i*256+16*896}")
        A(f"s_add_u32 s34, s33, {i*8*28*1024}\ns_waitcnt lgkmcnt(0)\nbuffer_store_dwordx4 {v(8+4*i,4)}, v5, s[24:27], s34 offen sc1")
    A.label(f"{name}_pf")
    A(f"s_cmp_ge_u32 s30, 28\ns_cbranch_scc1 {name}_pf2")
    A(f"s_waitcnt vmcnt(0)\ns_barrier\ns_cmp_lg_u32 s3, 0\ns_cbranch_scc1 {name}_pf2")
    A("v_and_b32 v21, 7, v1\nv_lshlrev_b32 v21, 2, v21\nglobal_load_dword v28, v21, s[8:9] sc1\ns_waitcnt vmcnt(0)")
    check(28, "global_load_dword v28, v21, s[8:9] sc1", cmpv="0x01010101")
    A(f"s_lshl_b32 s33, s30, 2\ns_add_u32 s33, s33, {WS_FL+31744}"); setflag("s33")
    A.label(f"{name}_pf2")
    PFS = int(os.environ.get("PFS", "100"))
    if PFS: A(f"s_sleep {PFS}")
    A("s_and_b32 s32, s30, 7\ns_lshr_b32 s32, s32, 1\ns_lshl_b32 s32, s32, 2\ns_lshr_b32 s33, s30, 3\ns_add_u32 s32, s32, s33\ns_lshl_b32 s32, s32, 19")
    for i in range(64):
        if i >= 48: A("s_waitcnt vmcnt(47)")
        A(f"buffer_load_dwordx4 {v(24+4*(i%48),4)}, v3, s[20:23], s32 offen\ns_add_u32 s32, s32, 8192")
    A("s_waitcnt vmcnt(0)")
    stp(1)
    A.label(f"{name}_end")
    A.end_kernel(name, 256, sgpr=102)
    A.launch(name, NG+NAUX, 512, LDS)
```

```python
from gen import *
from k1 import bf16r, gelu_block, GC0, GC1, LOG2E
from ssm import cmul, PITCH
import math, os
STI = int(os.environ.get("STI", "30"))
NR = int(os.environ.get("NR", "12"))
ZD = int(os.environ.get("ZD", "8"))
PRE = int(os.environ.get("PRE", "16"))
def gen_kf(A, name, kidx, STAMPS=False):
    NG = 224; NAUX = 32
    R1 = int(os.environ.get("R1", "6"))
    XN = R1*16384
    STG = 57*PITCH
    ST = max(8*STG, XN+57344); ST2 = ST + 2048
    CH = 29184
    RING2 = 2*CH
    LDS = max(RING2 + NR*8192, 8192+7*16384, ST2+512)
    assert LDS <= 163840
    SS = os.environ.get("SS", "m")
    def stp(slot, grp="m"):
        if STAMPS and (grp == SS or slot < 2): stamp(A, kidx, slot, 10, 76, 132)
    def check(reg, reload, want_nonzero=True, cmpv=None):
        L = A.newlabel("ck"); D = A.newlabel("ckd")
        A("s_mov_b32 s42, 0")
        A.label(L)
        A(f"v_cmp_eq_u32 vcc, 0, v{reg}" if cmpv is None else f"v_cmp_ne_u32 vcc, {cmpv}, v{reg}")
        A(f"s_add_u32 s42, s42, 1\ns_cmp_gt_u32 s42, 30000\ns_cbranch_scc1 {D}")
        A(f"s_cmp_eq_u64 vcc, 0\ns_cbranch_scc1 {D}\ns_sleep 2\n{reload}\ns_waitcnt vmcnt(0)\ns_branch {L}")
        A.label(D)
    WS_FL = WS_STAT + 262144
    SLP = int(os.environ.get("SLP", "2"))
    def setflag(sreg):
        A(f"v_mov_b32 v6, {sreg}\nv_mov_b32 v7, 1\ns_mov_b64 exec, 1\nbuffer_store_dword v7, v6, s[24:27], 0 offen sc1\ns_mov_b64 exec, -1")
    def pollflags(n, stride=4):
        L = A.newlabel("pf"); D = A.newlabel("pfd")
        A(f"v_mul_u32_u24 v6, {stride}, v1\ns_mov_b32 s42, 0\ns_mov_b32 exec_hi, {0 if n < 64 else -1}\ns_mov_b32 exec_lo, {hex((1<<min(n,32))-1)}")
        A.label(L)
        A("buffer_load_dword v7, v6, s[24:27], s38 offen sc1\ns_waitcnt vmcnt(0)\nv_cmp_eq_u32 vcc, 0, v7")
        A(f"s_add_u32 s42, s42, 1\ns_cmp_gt_u32 s42, 30000\ns_cbranch_scc1 {D}")
        A(f"s_cmp_eq_u64 vcc, 0\ns_cbranch_scc1 {D}\ns_sleep {SLP}\ns_branch {L}")
        A.label(D)
        A("s_mov_b64 exec, -1")
    A.begin_kernel(name)
    A(f"s_cmp_ge_u32 s2, {NG+NAUX}\ns_cbranch_scc1 {name}_end")
    A("s_load_dwordx2 s[4:5], s[0:1], 0\ns_load_dwordx2 s[6:7], s[0:1], 64\ns_load_dwordx4 s[8:11], s[0:1], 104")
    A("s_load_dwordx2 s[12:13], s[0:1], 88\ns_load_dwordx2 s[14:15], s[0:1], 72")
    A("s_load_dwordx8 s[48:55], s[0:1], 8\ns_load_dwordx4 s[56:59], s[0:1], 40\ns_load_dwordx2 s[60:61], s[0:1], 80\ns_load_dwordx2 s[62:63], s[0:1], 96")
    A("v_and_b32 v1, 63, v0\nv_lshrrev_b32 v2, 6, v0")
    A("s_nop 0\nv_readfirstlane_b32 s3, v2")
    A("s_and_b32 s28, s2, 7\ns_lshr_b32 s29, s2, 3\ns_and_b32 s32, s28, 1\ns_lshl_b32 s32, s32, 2")
    A("s_and_b32 s30, s29, 7\ns_lshr_b32 s31, s29, 3\ns_add_u32 s33, s31, s32\ns_add_u32 s34, s30, s32")
    A("s_cmp_ge_u32 s29, 24\ns_cselect_b32 s31, 3, s33\ns_cselect_b32 s30, s34, s30")
    A("s_lshr_b32 s28, s28, 1\ns_lshl_b32 s28, s28, 3\ns_add_u32 s30, s30, s28")
    A("s_lshl_b32 s64, s31, 6\ns_lshl_b32 s65, s30, 1\ns_add_u32 s64, s64, s65\ns_lshr_b32 s65, s3, 2\ns_add_u32 s64, s64, s65\ns_and_b32 s65, s3, 3")
    A("s_waitcnt lgkmcnt(0)")
    stp(0)
    A(f"s_cmp_ge_u32 s2, {NG}\ns_cbranch_scc1 {name}_prep")
    srd(A, 16, 4, 2048*896); srd(A, 20, 6, 448*3584); srd(A, 24, 10, WS_END)
    PR = 152
    A("s_lshr_b32 s36, s3, 2\ns_and_b32 s37, s3, 3")
    A(f"s_lshl_b32 s32, s31, 2\ns_add_u32 s32, s32, s37\ns_lshl_b32 s32, s32, 1\ns_add_u32 s32, s32, s36\ns_lshl_b32 s32, s32, 2\ns_lshl_b32 s33, s30, 8\ns_add_u32 s32, s32, s33\ns_add_u32 s96, s32, {WS_FL}")
    A(f"s_lshl_b32 s32, s31, 10\ns_lshl_b32 s33, s3, 7\ns_add_u32 s33, s33, s32\ns_lshl_b32 s34, s30, 2\ns_add_u32 s33, s33, s34\ns_add_u32 s97, s33, {WS_FL+8192}")
    A(f"s_lshl_b32 s33, s37, 8\ns_add_u32 s33, s33, s32\ns_lshl_b32 s34, s30, 3\ns_add_u32 s33, s33, s34\ns_lshl_b32 s34, s36, 2\ns_add_u32 s33, s33, s34\ns_add_u32 s98, s33, {WS_FL+16384}")
    A(f"s_mul_i32 s99, s30, {7*512}\ns_add_u32 s99, s99, {WS_STAT}\ns_add_u32 s43, s98, 8192")
    A(f"s_lshr_b32 s33, s30, 3\ns_lshl_b32 s33, s33, 8\ns_add_u32 s47, s33, s32\ns_add_u32 s47, s47, {WS_FL+24576}")
    def param_loads():
        A("s_lshl_b32 s38, s64, 9\ns_lshl_b32 s39, s65, 7\ns_add_u32 s38, s38, s39\nv_lshlrev_b32 v6, 1, v1\nv_add_u32 v6, s38, v6\ns_lshl_b32 s38, s64, 1\nv_mov_b32 v7, s38")
        for k in range(4): A(f"global_load_ushort {v(PR+k)}, v6, s[{48+2*k}:{49+2*k}]"); vm.issue("pp")
        A(f"global_load_ushort {v(PR+4)}, v7, s[56:57]"); vm.issue("pp")
        A(f"global_load_ushort {v(PR+5)}, v7, s[58:59]"); vm.issue("pp")
    vm = Trk(A, "vmcnt", 63); lg = Trk(A, "lgkmcnt", 15)
    A("v_lshrrev_b32 v3, 3, v0\nv_and_b32 v4, 7, v0")
    A(f"s_mul_i32 s32, s30, {64*896}")
    A(f"v_mul_u32_u24 v5, 896, v3\nv_lshl_add_u32 v5, v4, 4, v5")
    XR = 64
    for i in range(7):
        A(f"buffer_load_dwordx4 {v(XR+4*i,4)}, v5, s[16:19], s32 offen offset:{i*128}"); vm.issue("x")
    A("v_lshrrev_b32 v6, 5, v1\nv_and_b32 v7, 31, v1")
    A("v_lshl_add_u32 v8, v2, 2, v6")
    for e in range(2):
        d = 10+e
        A(f"v_add_u32 v9, {2*e}, v8")
        A(f"v_and_b32 v12, 7, v9\nv_lshlrev_b32 v12, 1, v12\nv_xor_b32 v12, v12, v7")
        A(f"v_and_b32 v13, 15, v12\nv_lshlrev_b32 v13, 4, v13")
        A(f"v_lshrrev_b32 v12, 4, v12\nv_mul_u32_u24 v12, 1792, v12")
        A(f"v_mul_u32_u24 v{d}, 3584, v9\nv_add3_u32 v{d}, v{d}, v12, v13")
    A(f"s_lshl_b32 s33, s31, 8")
    A(f"s_lshl_b32 s34, s3, 11")
    def dma(st):
        for e in range(2): dma1(st, e)
    def dma1(st, e):
        A(f"s_add_u32 m0, s34, {(st%R1)*16384+1024*e}\ns_add_u32 s35, s33, {st*32*3584}")
        A(f"buffer_load_dwordx4 v{10+e}, s[20:23], s35 offen lds"); vm.issue(f"w{st}")
    PLK = int(os.environ.get("PLK", "3")); D0 = int(os.environ.get("D0", str(R1)))
    for st in range(D0): dma(st)
    if PLK < 0: param_loads()
    XF = 96
    stp(2, "p")
    vm.wait("x")
    stp(3, "p")
    n0 = len(A.lines)
    for st in range(D0, R1): dma(st)
    dl = A.lines[n0:]; del A.lines[n0:]
    for i in range(28):
        A(f"v_lshlrev_b32 {v(XF+2*i)}, 16, {v(XR+i)}\nv_and_b32 {v(XF+2*i+1)}, 0xffff0000, {v(XR+i)}")
    for c in range(4): A(f"v_pk_add_f32 {v(16+2*c,2)}, {v(XF+2*c,2)}, {v(XF+8+2*c,2)}")
    for i in range(8, 28): A(f"v_pk_add_f32 {v(16+2*(i%4),2)}, {v(16+2*(i%4),2)}, {v(XF+2*i,2)}")
    A("v_pk_add_f32 v[16:17], v[16:17], v[18:19]\nv_pk_add_f32 v[20:21], v[20:21], v[22:23]\nv_pk_add_f32 v[16:17], v[16:17], v[20:21]\nv_add_f32 v16, v16, v17")
    def red8(r):
        A(f"s_nop 1\nv_add_f32_dpp {v(r)}, {v(r)}, {v(r)} quad_perm:[1,0,3,2] row_mask:0xf bank_mask:0xf")
        A(f"s_nop 1\nv_add_f32_dpp {v(r)}, {v(r)}, {v(r)} quad_perm:[2,3,0,1] row_mask:0xf bank_mask:0xf")
        A(f"s_nop 1\nv_add_f32_dpp {v(r)}, {v(r)}, {v(r)} row_half_mirror row_mask:0xf bank_mask:0xf")
    red8(16)
    A(f"v_mul_f32 v16, {f32(1/448)}, v16\nv_mov_b32 v17, v16")
    for i in range(28):
        t = 24+2*(i%4)
        A(f"v_pk_add_f32 {v(t,2)}, {v(XF+2*i,2)}, v[16:17] neg_lo:[0,1] neg_hi:[0,1]")
        if i < 4: A(f"v_pk_mul_f32 {v(32+2*i,2)}, {v(t,2)}, {v(t,2)}")
        else: A(f"v_pk_fma_f32 {v(32+2*(i%4),2)}, {v(t,2)}, {v(t,2)}, {v(32+2*(i%4),2)}")
    A("v_pk_add_f32 v[32:33], v[32:33], v[34:35]\nv_pk_add_f32 v[36:37], v[36:37], v[38:39]\nv_pk_add_f32 v[32:33], v[32:33], v[36:37]\nv_add_f32 v32, v32, v33")
    red8(32)
    A(f"v_mul_f32 v32, {f32(1/448)}, v32")
    bf16r(A, 32, 32)
    A(f"v_add_f32 v32, {f32(1e-5)}, v32"); bf16r(A, 32, 32)
    A("v_sqrt_f32 v32, v32\ns_nop 0"); bf16r(A, 32, 32)
    A("v_rcp_f32 v18, v32")
    bf16r(A, 16, 16)
    A("v_mov_b32 v17, v16")
    A("v_fma_f32 v19, -v32, v18, 1.0\nv_fma_f32 v18, v19, v18, v18\nv_mov_b32 v19, v18")
    A("v_lshrrev_b32 v20, 2, v4\nv_lshlrev_b32 v20, 2, v20\nv_and_b32 v21, 1, v4\nv_lshl_add_u32 v20, v21, 1, v20")
    A("v_bfe_u32 v21, v3, 1, 3\nv_xor_b32 v22, v20, v21\nv_xor_b32 v23, 1, v22")
    A("v_bfe_u32 v21, v4, 1, 1\nv_lshlrev_b32 v21, 3, v21")
    A(f"v_mul_u32_u24 v24, 896, v3\nv_add3_u32 v24, v24, v21, {XN}" if False else f"v_mul_u32_u24 v24, 896, v3\nv_add_u32 v24, v24, v21\nv_add_u32 v24, {XN}, v24")
    A("v_lshl_add_u32 v22, v22, 4, v24\nv_lshl_add_u32 v23, v23, 4, v24")
    for i in range(28):
        p = XF+2*i
        A(f"v_pk_add_f32 {v(p,2)}, {v(p,2)}, v[16:17] neg_lo:[0,1] neg_hi:[0,1]")
        A(f"v_cvt_pk_bf16_f32 {v(XR+i)}, {v(p)}, {v(p+1)}")
        A(f"v_lshlrev_b32 {v(p)}, 16, {v(XR+i)}\nv_and_b32 {v(p+1)}, 0xffff0000, {v(XR+i)}")
        A(f"v_pk_mul_f32 {v(p,2)}, {v(p,2)}, v[18:19]")
        A(f"v_cvt_pk_bf16_f32 {v(XR+i)}, {v(p)}, {v(p+1)}")
        if i % 4 == 3:
            j = i//4
            A(f"ds_write_b64 v22, {v(XR+4*j,2)} offset:{j*128}\nds_write_b64 v23, {v(XR+4*j+2,2)} offset:{j*128}")
    nd = len(dl)//3; DSP = int(os.environ.get("DSP", "24")); ln = A.lines[n0:]; del A.lines[n0:]
    for i in range(nd): A.lines += dl[3*i:3*i+3] + ln[DSP*i:DSP*(i+1)]
    A.lines += ln[DSP*nd:]
    stp(4, "p")
    A("v_and_b32 v3, 15, v1\nv_lshrrev_b32 v4, 4, v1")
    A("s_lshr_b32 s36, s3, 2\ns_and_b32 s37, s3, 3")
    A("s_lshl_b32 s38, s36, 5\nv_add_u32 v5, s38, v3")
    AA = 12
    for mb in range(2):
        A(f"v_add_u32 v6, {16*mb}, v5\nv_bfe_u32 v7, v6, 1, 3\nv_xor_b32 v7, v7, v4")
        A(f"v_mul_u32_u24 v6, 896, v6\nv_add_u32 v6, {XN}, v6\nv_lshl_add_u32 {v(AA+2*mb)}, v7, 4, v6")
        A(f"v_xor_b32 v7, 4, v7\nv_lshl_add_u32 {v(AA+2*mb+1)}, v7, 4, v6")
    A("v_lshrrev_b32 v6, 2, v1")
    A("v_and_b32 v7, 7, v6\nv_lshlrev_b32 v7, 1, v7")
    A("v_bfe_u32 v8, v1, 1, 1\ns_lshl_b32 s38, s37, 2\nv_add_u32 v8, s38, v8")
    A("v_xor_b32 v8, v8, v7\nv_and_b32 v9, 1, v1\nv_lshlrev_b32 v9, 3, v9\nv_lshl_add_u32 v9, v6, 9, v9")
    A("v_lshl_add_u32 v16, v8, 4, v9\nv_xor_b32 v17, 32, v16\nv_add_u32 v29, 65536, v16\nv_add_u32 v30, 65536, v17")
    A("v_bfe_u32 v6, v1, 2, 2\nv_lshl_add_u32 v6, v4, 3, v6\ns_lshl_b32 s38, s36, 5\nv_add_u32 v6, s38, v6")
    A("v_and_b32 v7, 3, v1\ns_lshr_b32 s38, s37, 1\ns_lshl_b32 s38, s38, 2\nv_add_u32 v7, s38, v7")
    A(f"s_and_b32 s38, s37, 1\ns_lshl_b32 s38, s38, 3\ns_lshl_b32 s39, s31, 7\ns_add_u32 s38, s38, s39\ns_add_u32 s38, s38, {XN}")
    for h in range(2):
        A(f"v_add_u32 v8, {4*h}, v6\nv_bfe_u32 v9, v8, 1, 3\nv_xor_b32 v9, v9, v7\nv_mul_u32_u24 v8, 896, v8\nv_lshl_add_u32 v8, v9, 4, v8\nv_add_u32 {v(18+h)}, s38, v8")
    A("s_lshl_b32 s38, s31, 6\ns_lshl_b32 s39, s37, 4\ns_add_u32 s38, s38, s39\nv_add_u32 v8, s38, v3\nv_lshlrev_b32 v8, 12, v8")
    A("s_lshl_b32 s38, s30, 7\ns_lshl_b32 s39, s36, 6\ns_add_u32 s38, s38, s39\nv_lshl_add_u32 v8, v4, 4, v8\nv_add_u32 v20, s38, v8")
    ACC = 32
    for i in range(32): A(f"v_mov_b32 {v(ACC+i)}, 0")
    vm.wait("w1")
    A("s_waitcnt lgkmcnt(0)\ns_barrier")
    A("ds_read_b64_tr_b16 v[24:25], v18\nds_read_b64_tr_b16 v[26:27], v19")
    FB = 64
    def frags(ks):
        b = FB + (ks % 3)*24
        for mb in range(2):
            A(f"ds_read_b128 {v(b+4*mb,4)}, {v(AA+2*mb+(ks%2))} offset:{(ks//2)*128}"); lg.issue(f"f{ks}")
        for zh in range(2):
            for bi in range(2):
                for h in range(2):
                    A(f"ds_read_b64_tr_b16 {v(b+8+(zh*2+bi)*4+2*h,2)}, {v((16 if ks%R1 < 4 else 29)+bi)} offset:{(ks%R1%4)*16384+zh*256+h*8192}"); lg.issue(f"f{ks}")
    stp(5, "p")
    lg.issue("xnt"); lg.issue("xnt")
    frags(0)
    lg.wait("xnt")
    A(f"buffer_store_dwordx4 v[24:27], v20, s[24:27], 0 offen sc1"); vm.issue("xnt")
    frags(1)
    A("v_and_b32 v21, 7, v1\nv_lshlrev_b32 v21, 2, v21\nv_lshlrev_b32 v22, 2, v1")
    DK = int(os.environ.get("DK", "2")); CK = int(os.environ.get("CK", "6")); XL = int(os.environ.get("XL", "12"))
    for ks in range(14):
        if ks+2 < 14: vm.wait(f"w{ks+2}")
        if ks == CK:
            vm.wait("dbg")
            A(f"s_cmp_lg_u32 s3, 0\ns_cbranch_scc1 {name}_np2"); check(28, "global_load_dword v28, v21, s[8:9] sc1", cmpv="0x01010101"); A.label(f"{name}_np2")
        lg.wait(f"f{ks}")
        if ks+2 < 14: A("s_barrier"); frags(ks+2)
        b = FB + (ks % 3)*24
        if ks == DK:
            A(f"s_cmp_lg_u32 s3, 0\ns_cbranch_scc1 {name}_np1\nglobal_load_dword v28, v21, s[8:9] sc1\ns_branch {name}_np1b")
            A.label(f"{name}_np1"); A("global_load_dword v28, v21, s[58:59]"); A.label(f"{name}_np1b"); vm.issue("dbg")
        if ks == PLK: param_loads()
        if ks == CK: setflag("s43"); vm.issue("arr")
        if ks == 7: stp(6, "p")
        if ks == XL:
            A("buffer_load_dword v28, v22, s[24:27], s47 offen sc1")
        for mb in range(2):
            for bi in range(2):
                A(f"v_mfma_f32_16x16x32_bf16 {v(ACC+16+(mb*2+bi)*4,4)}, {v(b+4*mb,4)}, {v(b+8+(2+bi)*4,4)}, {v(ACC+16+(mb*2+bi)*4,4)}")
                A(f"v_mfma_f32_16x16x32_bf16 {v(ACC+(mb*2+bi)*4,4)}, {v(b+8+bi*4,4)}, {v(b+4*mb,4)}, {v(ACC+(mb*2+bi)*4,4)}")
                if mb == 0 and ks+R1 < 14: dma1(ks+R1, bi)
    if XL == 14: A("buffer_load_dword v28, v22, s[24:27], s47 offen sc1")
    stp(2); stp(2, "a"); stp(7, "p")
    A(f"v_mov_b32 v31, {f32(GC1)}\ns_nop 7")
    Z2 = list(range(ACC+16, ACC+32)); Z1 = list(range(ACC, ACC+16))
    TMP = list(range(64, 80)); P2 = list(range(80, 88)); P1 = list(range(136, 144))
    gelu_block(A, Z2, TMP, 31, P2)
    for i in range(0, 16, 2):
        A(f"v_lshlrev_b32 {v(Z2[i])}, 16, {v(P2[i//2])}\nv_and_b32 {v(Z2[i+1])}, 0xffff0000, {v(P2[i//2])}")
    for mb in range(2):
        for i in range(4):
            a0 = Z2[(mb*2)*4+i]; a1 = Z2[(mb*2+1)*4+i]
            A(f"v_add_f32 {v(96+mb*4+i)}, {v(a0)}, {v(a1)}\nv_mul_f32 {v(104+mb*4+i)}, {v(a0)}, {v(a0)}\nv_fmac_f32 {v(104+mb*4+i)}, {v(a1)}, {v(a1)}")
    for sh in (1, 2, 4, 8):
        for r in range(96, 112):
            A(f"v_add_f32_dpp {v(r)}, {v(r)}, {v(r)} row_ror:{sh} row_mask:0xf bank_mask:0xf")
    A(f"s_lshl_b32 s38, s37, 9\ns_lshl_b32 s39, s36, 8\ns_add_u32 s38, s38, s39\ns_add_u32 s38, s38, {ST}\nv_lshlrev_b32 v6, 5, v4\nv_add_u32 v6, s38, v6")
    A("v_cmp_eq_u32 vcc, 0, v3\ns_and_saveexec_b64 s[40:41], vcc")
    for mb in range(2):
        for i in range(4):
            A(f"ds_write2_b32 v6, {v(96+mb*4+i)}, {v(104+mb*4+i)} offset0:{mb*32+i*2} offset1:{mb*32+i*2+1}")
    A("s_mov_b64 exec, s[40:41]")
    stp(3, "a")
    A("s_waitcnt vmcnt(0) lgkmcnt(0)\ns_barrier")
    A(f"s_cmp_lg_u32 s3, 0\ns_cbranch_scc1 {name}_nopub")
    A(f"v_lshlrev_b32 v6, 3, v1\nv_add_u32 v7, {ST}, v6")
    for wn in range(4): A(f"ds_read_b64 {v(96+2*wn,2)}, v7 offset:{wn*512}")
    A(f"s_lshl_b32 s39, s31, 9\ns_add_u32 s38, s99, s39")
    A("s_waitcnt lgkmcnt(0)\nv_pk_add_f32 v[96:97], v[96:97], v[98:99]\nv_pk_add_f32 v[100:101], v[100:101], v[102:103]\nv_pk_add_f32 v[96:97], v[96:97], v[100:101]")
    A("buffer_store_dwordx2 v[96:97], v6, s[24:27], s38 offen sc1")
    A.label(f"{name}_nopub")
    stp(4, "a")
    check(28, "buffer_load_dword v28, v22, s[24:27], s47 offen sc1")
    UR = 216; XE = 252
    A(f"s_lshl_b32 s33, s64, 12\ns_add_u32 s68, s10, s33\ns_addc_u32 s69, s11, 0\ns_mov_b32 s70, 4096\ns_mov_b32 s71, 0x20000")
    A(f"s_cmp_eq_u32 s65, 0\ns_cselect_b32 s33, 0, {-(512+32) & 0xffffffff}\nv_lshlrev_b32 v7, 6, v1\nv_add_u32 v7, s33, v7")
    for c in range(7): A(f"v_add_u32 v{11+c}, {16*c}, v7")
    A("v_lshlrev_b32 v2, 5, v3\nv_lshl_add_u32 v2, v4, 3, v2\ns_lshl_b32 s33, s65, 10\nv_add_u32 v2, s33, v2")
    uls = [f"buffer_load_dwordx4 {v(UR+4*c,4)}, v{11+c}, s[68:71], 0 offen" for c in range(7)] + [f"buffer_load_dwordx2 {v(XE+2*t,2)}, v2, s[68:71], 0 offen offset:{512*t}" for t in range(2)]
    USP = int(os.environ.get("USP", "3"))
    if USP == 0:
        for l in uls: A(l)
        uls = []
    for i in range(0, 16, 2): A(f"v_cvt_pk_bf16_f32 {v(P1[i//2])}, {v(Z1[i])}, {v(Z1[i+1])}")
    stp(5, "a")
    A(f"s_mul_i32 s66, s3, {STG}\nv_lshl_add_u32 v8, v1, 2, s66\nv_mul_u32_u24 v9, {PITCH}, v3\nv_lshl_add_u32 v9, v4, 4, v9\nv_add_u32 v9, s66, v9")
    for r in range(PR, PR+6): A(f"v_lshlrev_b32 v{r}, 16, v{r}")
    z = PR; DT = PR+4
    A(f"v_mul_f32 {v(DT)}, {f32(LOG2E)}, {v(DT)}\nv_exp_f32 {v(DT)}, {v(DT)}\nv_mul_f32 {v(z)}, {f32(LOG2E)}, {v(z)}\nv_exp_f32 {v(z)}, {v(z)}")
    A(f"v_max_f32_e64 v20, |{v(z+2)}|, |{v(z+3)}|")
    bf16r(A, DT, DT); bf16r(A, z, z)
    for sh in (1, 2, 4, 8):
        A(f"s_nop 1\nv_max_f32_dpp v20, v20, v20 row_ror:{sh} row_mask:0xf bank_mask:0xf")
    A(f"s_nop 1\nv_readlane_b32 s34, v20, 0\nv_readlane_b32 s35, v20, 16\nv_readlane_b32 s38, v20, 32\nv_readlane_b32 s39, v20, 48\nv_readfirstlane_b32 s72, {v(DT)}\nv_readfirstlane_b32 s73, {v(PR+5)}")
    A(f"s_max_u32 s34, s34, s35\ns_max_u32 s38, s38, s39\ns_max_u32 s34, s34, s38\ns_max_u32 s34, s34, {f32(1e-30)}\nv_rcp_f32 v21, s34")
    A(f"v_mul_f32 {v(z)}, {v(z)}, {v(DT)}\nv_mul_f32 {v(z+1)}, {v(z+1)}, {v(DT)}")
    A(f"v_mul_f32 {v(z)}, {f32(-LOG2E)}, {v(z)}\nv_mul_f32 {v(z+1)}, {f32(1/(2*math.pi))}, {v(z+1)}")
    A(f"v_mul_f32 {v(z+2)}, {v(z+2)}, v21\nv_mul_f32 {v(z+3)}, {v(z+3)}, v21")
    KD = 160; E1, E8, E128 = 172, 174, 176; G = 180; LO = 196; T0, T1 = 198, 200; CV = 204; FR = 64
    cvn = [0]
    def put(row, X, neg):
        c = CV + cvn[0] % 8; cvn[0] += 1
        return [f"v_cvt_pk_f16_f32 {v(c)}, {v(X)}, {'-' if neg else ''}{v(X+1)}", f"ds_write_b32 v8, {v(c)} offset:{row*PITCH}"]
    for E, m in ((E1, 1.0), (E8, 8.0), (E128, 128.0)):
        A(f"v_mul_f32 v178, {f32(m)}, {v(z)}\nv_mul_f32 v179, {f32(m)}, {v(z+1)}\nv_exp_f32 v178, v178\nv_fract_f32 v179, v179\nv_cos_f32 {v(E)}, v179\nv_sin_f32 {v(E+1)}, v179\ns_nop 0")
        A(f"v_mul_f32 {v(E)}, {v(E)}, v178\nv_mul_f32 {v(E+1)}, {v(E+1)}, v178")
    A(f"v_mov_b32 v212, 0x3c00\nds_write_b32 v8, v212 offset:{41*PITCH}")
    steps_lo = [("L", 42, E8, None)] + [("L", 41+l, LO, (LO, E8 if l == 2 else LO, E8)) for l in range(2, 16)]
    steps_hi = [("H", 0, z+2, None)]
    for b in range(1, 8): steps_hi.append(("H", b, G+2*b, (G+2*b, (z+2) if b == 1 else G+2*(b-1), E1)))
    for b in range(8): steps_hi.append(("H", 8+b, G+2*b, (G+2*b, (z+2) if b == 0 else G+2*b, E128)))
    for a_ in range(2):
        for b in range(4): steps_hi.append(("H", 16+4*a_+b, G+4*b, (G+4*b, G+4*b, E128)))
    for a_ in range(4):
        for b in range(2): steps_hi.append(("H", 24+2*a_+b, G+8*b, (G+8*b, G+8*b, E128)))
    for a_ in range(9): steps_hi.append(("H", 32+a_, G, (G, G, E128)))
    seq = []; il = 0
    for i, sh_ in enumerate(steps_hi):
        seq.append(sh_)
        if (i < 7 and i % 2 == 0) or i >= 24:
            if il < len(steps_lo): seq.append(steps_lo[il]); il += 1
    while il < len(steps_lo): seq.append(steps_lo[il]); il += 1
    pend = []
    SR = 32
    def statloads():
        for c in range(7): A(f"buffer_load_dwordx2 {v(SR+2*c,2)}, v10, s[24:27], s99 offen offset:{c*512} sc1")
    A("v_lshlrev_b32 v10, 3, v1")
    for n_, (kind, row, X, mul) in enumerate(seq):
        if uls and n_ % USP == 0: A(uls.pop(0))
        if n_ == STI:
            A(f"s_cmp_lg_u32 s3, 0\ns_cbranch_scc1 {name}_nsl"); statloads(); A.label(f"{name}_nsl")
        if mul:
            m = cmul(mul[0], mul[1], mul[2], T0 if kind == "H" else T1)
            A(m[0])
            for l in pend: A(l)
            A(m[1])
        else:
            for l in pend: A(l)
        pend = put(row, X, kind == "L")
    for l in pend: A(l)
    A("s_waitcnt lgkmcnt(0)"); lg.q = []
    stp(6, "a")
    for j in range(4):
        A(f"ds_read_b128 {v(FR+j*16+12,4)}, v9 offset:{41*PITCH+j*64}"); lg.issue(f"k{j}")
        for blk in range(3):
            A(f"ds_read_b128 {v(FR+j*16+4*blk,4)}, v9 offset:{blk*16*PITCH+j*64}"); lg.issue(f"k{j}")
    for j in range(4):
        lg.wait(f"k{j}")
        for blk in range(3):
            c = "0" if j == 0 else v(KD+4*blk,4)
            A(f"v_mfma_f32_16x16x32_f16 {v(KD+4*blk,4)}, {v(FR+j*16+4*blk,4)}, {v(FR+j*16+12,4)}, {c}")
    A(f"v_lshl_add_u32 v8, v1, 4, s66\nv_mov_b32 v22, s34\nv_mov_b32 v23, s66\ns_nop 7")
    for i in range(12): A(f"v_mul_f32 {v(KD+i)}, s34, {v(KD+i)}")
    for blk in range(3): A(f"ds_write_b128 v8, {v(KD+4*blk,4)} offset:{blk*1024}")
    A(f"ds_write_b32 v23, v22 offset:3072")
    stp(7, "a")
    A(f"s_cmp_lg_u32 s3, 0\ns_cbranch_scc1 {name}_nopoll")
    A("s_mov_b32 s42, 0")
    A.label(f"{name}_sp")
    A(f"s_waitcnt vmcnt(0)\nv_max3_u32 v6, {v(SR)}, {v(SR+1)}, {v(SR+2)}")
    for c in range(3, 13, 2): A(f"v_max3_u32 v6, v6, {v(SR+c)}, {v(SR+c+1)}")
    A(f"v_max_u32 v6, v6, {v(SR+13)}\nv_cmp_eq_u32 vcc, -1, v6")
    A(f"s_add_u32 s42, s42, 1\ns_cmp_gt_u32 s42, 30000\ns_cbranch_scc1 {name}_spd\ns_cmp_eq_u64 vcc, 0\ns_cbranch_scc1 {name}_spd\ns_sleep {SLP}")
    statloads()
    A(f"s_branch {name}_sp")
    A.label(f"{name}_spd")
    A(f"v_pk_add_f32 v[96:97], {v(SR,2)}, {v(SR+2,2)}\nv_mov_b32 v6, v10")
    for c in range(2, 7): A(f"v_pk_add_f32 v[96:97], v[96:97], {v(SR+2*c,2)}")
    A(f"v_mul_f32 v96, {f32(1/896)}, v96\nv_mul_f32 v97, {f32(1/896)}, v97\nv_fma_f32 v97, -v96, v96, v97\nv_max_f32 v97, 0, v97")
    bf16r(A, 97, 97); A(f"v_add_f32 v97, {f32(1e-5)}, v97"); bf16r(A, 97, 97)
    A("v_sqrt_f32 v97, v97\ns_nop 0"); bf16r(A, 97, 97)
    A("v_rcp_f32 v98, v97"); bf16r(A, 96, 96)
    A("v_fma_f32 v99, -v97, v98, 1.0\nv_fma_f32 v97, v99, v98, v98")
    A(f"v_add_u32 v6, {ST2}, v6\nds_write_b64 v6, v[96:97]")
    A.label(f"{name}_nopoll")
    A("s_waitcnt lgkmcnt(0)\ns_barrier")
    stp(3); stp(2, "b")
    vm.q = []
    A(f"s_lshl_b32 s38, s36, 8\ns_add_u32 s38, s38, {ST2}\nv_lshlrev_b32 v6, 5, v4\nv_add_u32 v6, s38, v6")
    for mb in range(2):
        A(f"ds_read_b128 {v(96+mb*8,4)}, v6 offset:{mb*128}\nds_read_b128 {v(100+mb*8,4)}, v6 offset:{mb*128+16}")
    A("s_waitcnt lgkmcnt(0)")
    for mb in range(2):
        for bi in range(2):
            zz = Z2[(mb*2+bi)*4:(mb*2+bi)*4+4]; p = P2[(mb*2+bi)*2:(mb*2+bi)*2+2]
            for i in range(4): A(f"v_sub_f32 {v(zz[i])}, {v(zz[i])}, {v(96+mb*8+2*i)}")
            for h in range(2): A(f"v_cvt_pk_bf16_f32 {v(p[h])}, {v(zz[2*h])}, {v(zz[2*h+1])}")
            for h in range(2): A(f"v_lshlrev_b32 {v(zz[2*h])}, 16, {v(p[h])}\nv_and_b32 {v(zz[2*h+1])}, 0xffff0000, {v(p[h])}")
            for i in range(4): A(f"v_mul_f32 {v(zz[i])}, {v(zz[i])}, {v(96+mb*8+2*i+1)}")
            for h in range(2): A(f"v_cvt_pk_bf16_f32 {v(64+bi*4+mb*2+h)}, {v(zz[2*h])}, {v(zz[2*h+1])}")
    A("s_nop 1")
    for bi in range(2):
        for h in range(2): A(f"v_permlane32_swap_b32 {v(64+bi*4+h)}, {v(64+bi*4+2+h)}")
    A("s_nop 1")
    for bi in range(2):
        for h in range(2): A(f"v_permlane16_swap_b32 {v(64+bi*4+h)}, {v(64+bi*4+2+h)}")
    A(f"s_lshl_b32 s35, s31, 2\ns_add_u32 s35, s35, s37\ns_lshl_b32 s38, s35, 6\ns_lshl_b32 s39, s30, 1\ns_add_u32 s38, s38, s39\ns_add_u32 s38, s38, s36\ns_lshl_b32 s38, s38, 11\ns_add_u32 s38, s38, {WS_Z2F}")
    A("v_lshlrev_b32 v5, 4, v1\ns_waitcnt vmcnt(0)")
    for bi in range(2):
        A(f"buffer_store_dwordx4 {v(64+bi*4,4)}, v5, s[24:27], s38 offen offset:{bi*1024} sc1"); vm.issue("z2")
    stp(3, "b")
    A(f"s_mul_i32 s66, s36, {4*STG}\nv_add_u32 v8, s66, v5\nv_mov_b32 v9, s66")
    for pw in range(4):
        for blk in range(3): A(f"ds_read_b128 {v(32+pw*12+4*blk,4)}, v8 offset:{pw*STG+blk*1024}")
        A(f"ds_read_b32 {v(80+pw)}, v9 offset:{pw*STG+3072}")
    KD = 20
    A("s_waitcnt lgkmcnt(0)\nv_max3_f32 v80, v80, v81, v82\nv_max_f32 v80, v80, v83\nv_rcp_f32 v81, v80")
    for i in range(0, 12, 2):
        A(f"v_pk_add_f32 {v(32+i,2)}, {v(32+i,2)}, {v(44+i,2)}\nv_pk_add_f32 {v(56+i,2)}, {v(56+i,2)}, {v(68+i,2)}")
    for i in range(0, 12, 2): A(f"v_pk_add_f32 {v(32+i,2)}, {v(32+i,2)}, {v(56+i,2)}")
    for i in range(12): A(f"v_mul_f32 {v(KD+i)}, {v(32+i)}, v81")
    A("v_mul_f32 v80, s72, v80\nv_add_f32 v80, v80, v80\ns_nop 0\nv_readfirstlane_b32 s74, v80")
    A(f"v_readlane_b32 s44, {v(KD+4)}, 0\nv_readlane_b32 s45, {v(KD+4)}, 32\nv_readlane_b32 s46, {v(KD+8)}, 0\nv_mov_b32 v9, 0")
    A("s_barrier")
    stp(4, "b")
    srd(A, 20, 14, 2048*4096)
    A("v_lshrrev_b32 v6, 3, v1\ns_lshl_b32 s32, s3, 3\nv_add_u32 v6, s32, v6\nv_and_b32 v7, 7, v1\nv_bfe_u32 v8, v6, 1, 3\nv_xor_b32 v8, v8, v7\nv_lshlrev_b32 v6, 12, v6\nv_lshl_add_u32 v18, v8, 4, v6")
    A(f"s_lshl_b32 s67, s30, 18\ns_lshl_b32 s75, s3, 10\ns_add_u32 s75, s75, {RING2}")
    ROT = int(os.environ.get("ROT", "0"))
    if ROT: A(f"s_lshl_b32 s100, s30, 1\ns_mul_i32 s101, s31, {os.environ.get('ROTC', '5')}\ns_add_u32 s100, s100, s101\ns_and_b32 s100, s100, {ROT-1}\ns_lshl_b32 s100, s100, 7")
    def rot(d, stg, base, sh):
        if not ROT: return f"s_add_u32 {d}, {base}, {(stg*128) << sh}"
        r = f"s_add_u32 {d}, s100, {(stg%ROT)*128}\ns_and_b32 {d}, {d}, {ROT*128-1}\n"
        if stg >= ROT: r += f"s_add_u32 {d}, {d}, {(stg//ROT)*ROT*128}\n"
        if sh: r += f"s_lshl_b32 {d}, {d}, {sh}\n"
        return r + f"s_add_u32 {d}, {d}, {base}"
    def dma2(stg):
        A(f"s_add_u32 m0, s75, {(stg%NR)*8192}\n" + rot("s39", stg, "s67", 0))
        A(f"buffer_load_dwordx4 v18, s[20:23], s39 offen lds"); vm.issue(f"w{stg}")
    ZF = int(os.environ.get("ZF", "12"))
    D2 = int(os.environ.get("D2", "2"))
    grp = []
    for stg in range(NR):
        n0 = len(A.lines)
        if stg == ZF: vm.wait("z2"); setflag("s97"); vm.issue("zf")
        dma2(stg)
        if stg == NR-1 and ZF == NR: vm.wait("z2"); setflag("s97"); vm.issue("zf")
        if stg >= D2: grp.append(A.lines[n0:]); del A.lines[n0:]
    def splice(n0, groups):
        ln = A.lines[n0:]; del A.lines[n0:]
        ok = []; full = True
        for i, l in enumerate(ln):
            if full and "vcc" not in l: ok.append(i)
            if "saveexec" in l or "exec_hi, 0" in l or "exec_lo, 0" in l: full = False
            if "s_mov_b64 exec, s[40:41]" in l or "exec_hi, -1" in l or "exec_lo, -1" in l: full = True
        g = list(groups); step = max(1, len(ok)//max(1, len(g))); at = {ok[min(k*step, len(ok)-1)]: [] for k in range(len(g))}
        for k, x in enumerate(g): at[ok[min(k*step, len(ok)-1)]] += x
        for i, l in enumerate(ln): A.lines += at.get(i, []) + [l]
    NU = int(os.environ.get("NU", "3"))
    U16 = 0; KA = 4608; K16 = KA+1280; K4 = K16+384; K8 = K4+384; W16 = 8192; W4 = W16+5376; W8 = W4+8256
    YA = 0; YC = W4; YD = W8-1024
    assert W8+7296 <= CH
    A(f"s_mul_i32 s66, s36, {CH}\nv_add_u32 v8, s66, v5")
    UF = 32
    n0 = len(A.lines)
    for i in range(4): A(f"v_mov_b32 {v(88+i)}, 0")
    for i in range(28): A(f"v_lshlrev_b32 {v(UF+2*i)}, 16, {v(UR+i)}\nv_and_b32 {v(UF+2*i+1)}, 0xffff0000, {v(UR+i)}")
    splice(n0, grp[:NU]); grp = grp[NU:]
    if ZF == NR+1: vm.wait("z2"); setflag("s97"); vm.issue("zf")
    stp(5, "b")
    UR = 100
    P = lambda k: v(UF+k)
    def S(dst, k, r): return f"v_sub_f32 {v(dst)}, {P(k+r)}, {P(k-r-1)}"
    def prefix():
        for k in range(5, 52): A(f"v_add_f32 {P(k)}, {P(k-1)}, {P(k)}")
    def kzero(off, n16):
        A(f"v_cmp_gt_u32 vcc, {n16}, v1\ns_and_saveexec_b64 s[40:41], vcc\nds_write_b128 v8, v[88:91] offset:{off}\ns_mov_b64 exec, s[40:41]")
    hi = lambda i: '_d16_hi' if i % 2 else ''
    A(f"s_cmp_eq_u32 s65, 1\ns_cbranch_scc1 {name}_b1\ns_cmp_eq_u32 s65, 2\ns_cbranch_scc1 {name}_b2\ns_cmp_eq_u32 s65, 3\ns_cbranch_scc1 {name}_b3")
    n0 = len(A.lines)
    A(f"ds_write_b128 v8, v[88:91] offset:{KA}"); kzero(KA+1024, 16); kzero(U16, 32)
    for i in range(16): A(f"v_cvt_pk_f16_f32 {v(UR+i)}, {v(UF+2*i)}, {v(UF+2*i+1)}")
    A("v_lshl_add_u32 v10, v1, 6, s66")
    for c in range(4): A(f"ds_write_b128 v10, {v(UR+4*c,4)} offset:{U16+512+16*c}")
    A(f"v_writelane_b32 v9, s44, 63\nv_sub_f32 {v(KD+3)}, {v(KD+3)}, v9")
    for i in (0, 2): A(f"v_cvt_pk_f16_f32 {v(KD+i)}, {v(KD+i)}, {v(KD+i+1)}")
    A("v_lshrrev_b32 v10, 1, v4\nv_lshlrev_b32 v10, 7, v10\nv_lshl_add_u32 v10, v3, 3, v10\nv_and_b32 v11, 1, v4\nv_lshl_add_u32 v10, v11, 2, v10")
    A(f"v_sub_u32 v10, 285, v10\nv_lshl_add_u32 v10, v10, 1, s66")
    for cp in range(2):
        for i in range(4): A(f"ds_write_b16{hi(i)} v10, {v(KD+(i//2)*2)} offset:{KA+cp*642+(3-i)*2}")
    splice(n0, grp)
    A(f"s_branch {name}_bd")
    A.label(f"{name}_b1")
    n0 = len(A.lines)
    kzero(K16, 24); prefix()
    A("v_lshl_add_u32 v10, v1, 3, s66")
    for phi in range(16):
        if phi == 15: splice(n0, grp); A("v_cmp_gt_u32 vcc, 40, v1\ns_and_saveexec_b64 s[40:41], vcc")
        o = 100 + (phi % 2)*6
        for lam in range(2):
            k = 16+16*lam+phi
            A(S(o+2+2*lam, k-8, 3)); A(S(o+3+2*lam, k, 4))
        for lam in range(2): A(f"v_cvt_pk_f16_f32 {v(o+lam)}, {v(o+2+2*lam)}, {v(o+3+2*lam)}")
        A(f"ds_write_b64 v10, {v(o,2)} offset:{W16+phi*336}")
    A("s_mov_b64 exec, s[40:41]")
    for i in (8, 10): A(f"v_cvt_pk_f16_f32 {v(KD+i)}, {v(KD+i)}, {v(KD+i+1)}")
    A(f"v_lshl_add_u32 v10, v4, 6, v3\nv_sub_u32 v10, {111+128}, v10\nv_lshl_add_u32 v10, v10, 1, s66")
    A("v_cmp_gt_u32 vcc, 33, v1\ns_and_saveexec_b64 s[40:41], vcc")
    A(f"ds_write_b16 v10, {v(KD+8)} offset:{K16-256+96}\ns_mov_b32 exec_hi, 0")
    for i in range(1, 4): A(f"ds_write_b16{hi(i)} v10, {v(KD+8+(i//2)*2)} offset:{K16-256+(3-i)*32}")
    A(f"s_mov_b64 exec, s[40:41]\ns_branch {name}_bd")
    A.label(f"{name}_b2")
    n0 = len(A.lines)
    kzero(K4, 24)
    A("v_lshl_add_u32 v10, v1, 5, s66")
    for phi in range(4):
        o = 100 + (phi % 2)*8
        for lam in range(8):
            k = 16+4*lam+phi
            A(f"v_add_f32 {v(116+lam)}, {P(k-1)}, {P(k)}")
        for lam in range(8):
            k = 16+4*lam+phi
            A(f"v_add_f32 {v(116+lam)}, {v(116+lam)}, {P(k+1)}")
        for lam in range(8):
            k = 16+4*lam+phi
            A(f"v_cvt_pk_f16_f32 {v(o+lam)}, {P(k-2)}, {v(116+lam)}")
        A(f"ds_write_b128 v10, {v(o,4)} offset:{W4+phi*2064}\nds_write_b128 v10, {v(o+4,4)} offset:{W4+phi*2064+16}")
    splice(n0, grp)
    A(f"v_writelane_b32 v9, s45, 31\nv_sub_f32 {v(KD+7)}, {v(KD+7)}, v9")
    for i in (4, 6): A(f"v_cvt_pk_f16_f32 {v(KD+i)}, {v(KD+i)}, {v(KD+i+1)}")
    A("v_and_b32 v11, 1, v4\nv_lshlrev_b32 v11, 6, v11\nv_lshl_add_u32 v10, v3, 2, v11\nv_sub_u32 v10, 156, v10\nv_lshl_add_u32 v10, v10, 1, s66\ns_mov_b32 exec_hi, 0")
    for i in range(4): A(f"ds_write_b16{hi(i)} v10, {v(KD+4+(i//2)*2)} offset:{K4+(3-i)*2}")
    A(f"s_mov_b32 exec_hi, -1\ns_branch {name}_bd")
    A.label(f"{name}_b3")
    n0 = len(A.lines)
    kzero(K8, 24); prefix()
    for phi in range(8):
        if phi == 7: splice(n0, grp); A("v_cmp_gt_u32 vcc, 56, v1\ns_and_saveexec_b64 s[40:41], vcc")
        o = 100 + (phi % 2)*12
        for lam in range(4):
            k = 16+8*lam+phi
            A(S(o+4+lam, k-4, 1)); A(S(o+8+lam, k, 2))
        for lam in range(4): A(f"v_cvt_pk_f16_f32 {v(o+lam)}, {v(o+4+lam)}, {v(o+8+lam)}")
        A(f"ds_write_b128 v8, {v(o,4)} offset:{W8+phi*912}")
    A("s_mov_b64 exec, s[40:41]")
    A(f"v_writelane_b32 v9, s46, 63\nv_sub_f32 {v(KD+7)}, {v(KD+7)}, v9")
    for i in (4, 6): A(f"v_cvt_pk_f16_f32 {v(KD+i)}, {v(KD+i)}, {v(KD+i+1)}")
    A("v_and_b32 v11, 1, v4\nv_lshlrev_b32 v11, 6, v11\nv_lshl_add_u32 v11, v3, 1, v11\nv_sub_u32 v11, 126, v11\nv_lshl_add_u32 v11, v11, 1, s66\ns_mov_b32 exec_lo, 0")
    for i in range(4): A(f"ds_write_b16{hi(i)} v11, {v(KD+4+(i//2)*2)} offset:{K8+66-64*(i//2)-2*(i%2)}")
    A("s_mov_b32 exec_lo, -1")
    A.label(f"{name}_bd")
    stp(6, "b")
    if ZF > NR+1: vm.wait("z2"); setflag("s97")
    stp(7, "b")
    EFL = int(os.environ.get("EFL", "0"))
    EFT = "s_lshl_b32 s38, s30, 2\ns_sub_u32 s38, s97, s38\nv_lshlrev_b32 v6, 2, v1\nv_and_b32 v6, 0x7c, v6\nbuffer_load_dword v0, v6, s[24:27], s38 offen sc1"
    if EFL: A(EFT)
    A("s_waitcnt lgkmcnt(0)\ns_barrier")
    stp(4); stp(2, "c")
    def tfrags(dst, areg, off0, n, step):
        for d in range(n):
            o = (off0 - step*d)//4
            A(f"ds_read2_b32 {v(dst+4*d,2)}, {v(areg)} offset0:{o} offset1:{o+1}\nds_read2_b32 {v(dst+4*d+2,2)}, {v(areg)} offset0:{o+2} offset1:{o+3}")
    def mfj(ac, first, aop, bop):
        return f"v_mfma_f32_16x16x32_f16 {v(ac,4)}, {aop}, {bop}, {'0' if first else v(ac,4)}"
    JPS = int(os.environ.get("JPS", "2"))
    TB = 160; RG = 236
    ACC = 20; FB = 52
    ZS = [84, 92, 100, 108, 116, 124, 144, 152][:ZD]
    A(f"v_lshlrev_b32 v11, 2, v4\nv_sub_u32 v11, v11, v3\nv_lshlrev_b32 v11, 2, v11\nv_add_u32 v11, {K16+60}, v11\nv_add_u32 v11, s66, v11")
    A("v_lshlrev_b32 v12, 6, v3\nv_lshl_add_u32 v12, v4, 4, v12\nv_add_u32 v12, s66, v12")
    A("v_mul_u32_u24 v13, 336, v3\nv_lshl_add_u32 v13, v4, 4, v13\nv_add_u32 v13, s66, v13")
    A(f"v_lshrrev_b32 v6, 1, v3\nv_xor_b32 v6, v6, v4\ns_lshl_b32 s38, s36, 2\nv_xor_b32 v6, s38, v6\nv_lshlrev_b32 v7, 7, v3\nv_lshl_add_u32 v19, v6, 4, v7\nv_add_u32 v19, {RING2}, v19")
    A(f"s_lshl_b32 s34, s35, 17\ns_lshl_b32 s39, s36, 11\ns_add_u32 s34, s34, s39\ns_add_u32 s34, s34, {WS_Z2F}")
    A(f"s_lshl_b32 s33, s64, 12\ns_add_u32 s33, s33, {WS_AT}\ns_add_u32 s68, s10, s33\ns_addc_u32 s69, s11, 0")
    A("s_lshl_b32 s38, s30, 7\ns_lshl_b32 s39, s36, 6\ns_add_u32 s38, s38, s39\nv_lshlrev_b32 v6, 1, v3\nv_add_u32 v6, s38, v6")
    for t in range(2): A(f"global_load_ushort {v(16+t)}, v6, s[60:61] offset:{32*t}")
    A("s_lshl_b32 s33, s65, 11\nv_add_u32 v9, s33, v12\nv_add_u32 v135, 65536, v19")
    WR = 160
    A(f"s_mul_i32 s47, s31, {4*28}\ns_lshl_b32 s39, s3, 2\ns_add_u32 s47, s47, s39\ns_lshl_b32 s47, s47, 10\ns_add_u32 s47, s47, {WS_WOF}")
    def zl(stg):
        A(f"s_add_u32 s38, s34, {stg*4096}")
        for bi in range(2):
            A(f"buffer_load_dwordx4 {v(ZS[stg%ZD]+4*bi,4)}, v5, s[24:27], s38 offen offset:{bi*1024}"); vm.issue(f"z{stg}")
    GAP = int(os.environ.get("GAP", "2"))
    def zl1(stg, bi):
        A(rot("s38", stg, "s34", 5) + f"\nbuffer_load_dwordx4 {v(ZS[stg%ZD]+4*bi,4)}, v5, s[24:27], s38 offen offset:{bi*1024}"); vm.issue(f"z{stg}")
    def frags2(stg):
        b = FB + (stg % 2)*16
        for tb in range(4): A(f"ds_read_b128 {v(b+tb*4,4)}, {'v19' if stg%NR < 8 else 'v135'} offset:{(stg%NR%8)*8192+tb*2048}")
    EF = int(os.environ.get("EF", "8"))
    if EF >= 0 and not EFL: A(EFT)
    A(f"s_cmp_eq_u32 s65, 1\ns_cbranch_scc1 {name}_c1\ns_cmp_eq_u32 s65, 2\ns_cbranch_scc1 {name}_c2\ns_cmp_eq_u32 s65, 3\ns_cbranch_scc1 {name}_c3")
    NBAT = (54-PRE+JPS-1)//JPS
    PG = int(os.environ.get("PG", "16"))
    def fladdr():
        A(f"s_lshl_b32 s38, s30, 2\ns_sub_u32 s38, s97, s38\nv_min_u32 v6, 59, v1\nv_lshlrev_b32 v6, 2, v6\nv_mov_b32 v7, s38\nv_mov_b32 v0, {WS_FL+31744-128}\nv_cmp_gt_u32 vcc, 32, v1\nv_cndmask_b32 v7, v0, v7, vcc\nv_add_u32 v6, v6, v7")
    WL = int(os.environ.get("WL", "16"))
    assert NBAT+3 < 32-WL//2
    FLS = int(os.environ.get("FLS", "3"))
    FLL = "buffer_load_dword v0, v6, s[24:27], 0 offen sc1"
    for role in range(4):
        if role: A.label(f"{name}_c{role}")
        jobs = []; wr = []
        if role < 2:
            TD = TB; TT = TB+36; T16 = TB+40; AC = TB+60
            A("v_and_b32 v10, 1, v3\nv_mul_u32_u24 v10, 642, v10\nv_lshlrev_b32 v14, 3, v4\nv_sub_u32 v14, v14, v3\nv_lshl_add_u32 v10, v14, 1, v10")
            A(f"v_add_u32 v10, {KA+32}, v10\nv_add_u32 v10, s66, v10")
            tfrags(TD, 10, 512, 9, 64)
            tfrags(T16, 11, 256, 5 if role else 1, 64)
            A("v_mov_b32 v10, s46\nv_cvt_pk_f16_f32 v10, v10, v10\nv_sub_u32 v14, 5, v14\nv_and_b32 v15, 0xffff, v10\nv_and_b32 v20, 0xffff0000, v10")
            for p in range(8): A(f"v_cmp_eq_u32 {s(80+2*p,2)}, {p}, v14")
            for p in range(4): A(f"v_cndmask_b32 {v(TT+p)}, 0, v15, {s(80+4*p,2)}")
            for p in range(4): A(f"v_cndmask_b32 {v(TT+p)}, {v(TT+p)}, v20, {s(82+4*p,2)}")
            A("v_lshlrev_b32 v10, 5, v3\nv_lshl_add_u32 v10, v4, 4, v10\nv_add_u32 v10, s66, v10")
            for nb in range(4*role, 4*role+4):
                ac = AC+4*(nb % 4)
                for d in range(9):
                    dp = 1+2*d
                    if nb == 0 and dp > 15: continue
                    jobs.append((10, U16+512+512*nb-32*dp, lambda f, ac=ac, d=d: mfj(ac, d == 0, v(TD+4*d,4), v(f,4))))
                if nb >= 3: jobs.append((10, U16+512+512*nb-2048, lambda f, ac=ac: mfj(ac, False, v(TT,4), v(f,4))))
                for d in range(5):
                    if nb-3-d >= 0: jobs.append((13, W16+64*(nb-3-d), lambda f, ac=ac, d=d: mfj(ac, False, v(f,4), v(T16+4*d,4))))
                wr.append(f"ds_write_b128 v12, {v(ac,4)} offset:{YA+1024*nb}")
        elif role == 2:
            AC = TB+20
            tfrags(TB, 11, 256+384, 5, 64)
            A("v_and_b32 v10, 3, v3\nv_mul_u32_u24 v10, 2064, v10\nv_lshrrev_b32 v14, 2, v3\nv_lshl_add_u32 v10, v14, 6, v10\nv_lshl_add_u32 v10, v4, 4, v10\nv_add_u32 v10, s66, v10")
            for t in range(8):
                for d in range(5):
                    if 4*t-d >= 0: jobs.append((10, W4+64*(4*t-d), lambda f, ac=AC+4*t, d=d: mfj(ac, d == 0, v(f,4), v(TB+4*d,4))))
                wr.append(f"ds_write_b128 v8, {v(AC+4*t,4)} offset:{YC+1024*t}")
        else:
            AC = TB+20
            A("v_add_u32 v14, 768, v11")
            tfrags(TB, 14, 256, 5, 64)
            A("v_and_b32 v10, 7, v3\nv_mul_u32_u24 v10, 912, v10\nv_lshrrev_b32 v14, 3, v3\nv_lshl_add_u32 v10, v14, 6, v10\nv_lshl_add_u32 v10, v4, 4, v10\nv_add_u32 v10, s66, v10")
            A("v_lshrrev_b32 v14, 1, v4\nv_lshlrev_b32 v14, 9, v14\nv_lshl_add_u32 v14, v3, 5, v14\nv_and_b32 v15, 1, v4\nv_lshl_add_u32 v14, v15, 4, v14\nv_add_u32 v14, s66, v14")
            for t in range(1, 8):
                for d in range(5):
                    if 2*t-2-d >= 0: jobs.append((10, W8+64*(2*t-2-d), lambda f, ac=AC+4*(t-1), d=d: mfj(ac, d == 0, v(f,4), v(TB+4*d,4))))
                wr.append(f"ds_write_b128 v14, {v(AC+4*(t-1),4)} offset:{YD+1024*t}")
        pre = jobs[:PRE]; jobs = jobs[PRE:]
        PRELINES = True
        def zpoll():
            stp(3, "c")
            L = A.newlabel("ef")
            if EF >= 0: A(f"s_waitcnt vmcnt(0)\nv_cmp_eq_u32 vcc, 0, v0\ns_and_b32 s38, vcc_lo, {hex((1<<PG)-1)}\ns_cbranch_scc0 {L}")
            A("s_lshl_b32 s38, s30, 2\ns_sub_u32 s38, s97, s38")
            pollflags(PG)
            A.label(L)
            if PG == 32: A(f"s_mov_b32 s38, {WS_FL+31744}"); pollflags(28)
            stp(4, "c")
            vm.q = []
        zq = [(stg, bi) for stg in range(ZD) for bi in range(2)]
        ZE = int(os.environ.get("ZE", "0"))
        if ZE:
            zpoll()
            for _ in range(ZE): zl1(*zq.pop(0))
        lg.q = []; A("s_waitcnt lgkmcnt(0)")
        for i, jb in enumerate(pre): A(f"ds_read_b128 {v(20+4*i,4)}, {v(jb[0])} offset:{jb[1]}"); lg.issue(f"j{i}")
        for i, jb in enumerate(pre):
            if i == EF and not ZE: zpoll()
            lg.wait(f"j{i}"); A(jb[2](20+4*i))
            if 0 <= EF <= i:
                for _ in range(2):
                    if zq: zl1(*zq.pop(0))
        if EF < 0 or EF >= len(pre): zpoll()
        for q_ in zq: zl1(*q_)
        A("s_barrier")
        stp(5); stp(5, "c")
        def cread(bt):
            for k, jb in enumerate(jobs[bt*JPS:(bt+1)*JPS]):
                A(f"ds_read_b128 {v(RG+((bt%2)*JPS+k)*4,4)}, {v(jb[0])} offset:{jb[1]}")
        frags2(0); cread(0)
        A(f"v_mov_b32 v15, {f32(GC1)}")
        Y = TB
        for stg in range(32):
            if stg+1 >= NR and stg+1 < 32: vm.wait(f"w{stg+1}")
            vm.wait(f"z{stg}")
            if PG < 32 and stg == PG-ZD+1:
                vm.wait("fl")
                L = A.newlabel("fs")
                A(f"v_cmp_eq_u32 vcc, 0, v0\ns_cmp_eq_u64 vcc, 0\ns_cbranch_scc1 {L}")
                fladdr(); A("v_mov_b32 v0, 0"); check(0, FLL)
                A.label(L)
            A("s_waitcnt lgkmcnt(0)")
            if stg+1 < 32: A("s_barrier")
            b = FB + (stg % 2)*16; zb = ZS[stg % ZD]
            mf = []
            for tb in range(4):
                for bi in range(2):
                    ac = v(ACC+(tb*2+bi)*4,4)
                    mf.append(f"v_mfma_f32_16x16x32_bf16 {ac}, {v(zb+bi*4,4)}, {v(b+tb*4,4)}, {'0' if stg == 0 else ac}")
            for k, jb in enumerate(jobs[stg*JPS:(stg+1)*JPS]): mf.append(jb[2](RG+((stg%2)*JPS+k)*4))
            fill = []
            def lds_part():
                if stg+1 < 32: frags2(stg+1)
                cread(stg+1)
                if stg == NBAT:
                    for w_ in wr: A(w_)
                if stg == NBAT+1:
                    for t in range(2):
                        for k, YY in enumerate((YA, YC) if (role == 0 and t == 0) else (YA, YC, YD)): A(f"ds_read_b128 {v(Y+(t*4+k)*4,4)}, v9 offset:{YY+1024*t}")
            fill.append(lds_part)
            if stg+NR < 32: fill.append(lambda: dma2(stg+NR))
            zs = stg+ZD-1
            if stg >= 1 and zs < 32:
                fill.append(lambda: zl1(zs, 0)); fill.append(lambda: zl1(zs, 1))
            if PG < 32 and stg == FLS:
                def flr(): fladdr(); A(FLL); vm.issue("fl")
                fill.append(flr)
            if 32-WL//2 <= stg < 32:
                for q_ in range(2):
                    n_ = (stg-(32-WL//2))*2+q_; j = n_//4; ks = n_ % 4
                    def wl(j=j, ks=ks):
                        A(f"s_add_u32 s38, s47, {j*28*1024}\nbuffer_load_dwordx4 {v(WR+ks*16+j*4,4)}, v5, s[24:27], s38 offen offset:{ks*1024}"); vm.issue("W")
                    fill.append(wl)
            if stg == 8: stp(7, "c")
            if 2 <= stg < 18 and stg % 2 == 0:
                pr = P1[(stg-2)//2]
                def g1(pr=pr):
                    A(f"v_lshlrev_b32 v6, 16, {v(pr)}\nv_and_b32 v7, 0xffff0000, {v(pr)}\nv_mul_f32 v132, v6, v6\nv_mul_f32 v133, v7, v7")
                    A(f"v_fmaak_f32 v132, v132, v15, {f32(GC0)}\nv_fmaak_f32 v133, v133, v15, {f32(GC0)}\nv_mul_f32 v132, v132, v6\nv_mul_f32 v133, v133, v7\nv_exp_f32 v132, v132\nv_exp_f32 v133, v133")
                def g2(pr=pr):
                    A(f"v_add_f32 v132, 1.0, v132\nv_add_f32 v133, 1.0, v133\nv_rcp_f32 v132, v132\nv_rcp_f32 v133, v133\ns_nop 0\nv_mul_f32 v6, v6, v132\nv_mul_f32 v7, v7, v133\nv_cvt_pk_bf16_f32 {v(pr)}, v6, v7")
                fill.append(g1); fill.append(g2)
            for i, m in enumerate(mf):
                A(m)
                if i % GAP == 0 and fill: fill.pop(0)()
            for f_ in fill: f_()
            if stg in (NBAT+2, NBAT+3):
                t = stg-NBAT-2
                for h in range(2):
                    y = Y+t*16+2*h; x = XE+t*2+h; tt = TB+32+4*(t*2+h)
                    if not (role == 0 and t == 0): A(f"v_pk_add_f32 {v(y+4,2)}, {v(y+4,2)}, {v(y+8,2)}")
                    A(f"v_pk_add_f32 {v(y,2)}, {v(y,2)}, {v(y+4,2)}")
                    A(f"v_mul_f32 {v(y)}, s74, {v(y)}\nv_mul_f32 {v(y+1)}, s74, {v(y+1)}")
                    A(f"v_lshlrev_b32 {v(tt)}, 16, {v(x)}\nv_and_b32 {v(tt+1)}, 0xffff0000, {v(x)}\nv_mul_f32 {v(tt)}, s73, {v(tt)}\nv_mul_f32 {v(tt+1)}, s73, {v(tt+1)}")
                    A(f"v_cvt_pk_bf16_f32 {v(x)}, {v(tt)}, {v(tt+1)}\nv_cvt_pk_bf16_f32 {v(tt+2)}, {v(y)}, {v(y+1)}")
                    A(f"v_lshlrev_b32 {v(tt)}, 16, {v(x)}\nv_and_b32 {v(tt+1)}, 0xffff0000, {v(x)}\nv_lshlrev_b32 {v(y)}, 16, {v(tt+2)}\nv_and_b32 {v(y+1)}, 0xffff0000, {v(tt+2)}")
                    A(f"v_pk_add_f32 {v(tt,2)}, {v(tt,2)}, {v(y,2)}\nv_cvt_pk_bf16_f32 {v(x)}, {v(tt)}, {v(tt+1)}")
                A(f"buffer_store_dwordx2 {v(XE+2*t,2)}, v2, s[68:71], 0 offen offset:{512*t} sc1"); vm.issue("at")
            if stg == NBAT+8 or (stg == 31 and NBAT+8 > 31): vm.wait("at"); setflag("s98")
        if role < 3: A(f"s_branch {name}_cd")
    A.label(f"{name}_cd")
    stp(6); stp(2, "d")
    A(f"s_lshl_b32 s38, s3, 12\nv_add_u32 v6, s38, v5\ns_xor_b32 s38, s3, 4\ns_lshl_b32 s38, s38, 12\nv_add_u32 v7, s38, v5")
    A(f"v_lshlrev_b32 v16, 16, v16\nv_lshlrev_b32 v17, 16, v17\ns_nop 4\ns_cmp_eq_u32 s36, 0\ns_cbranch_scc1 {name}_x0")
    for i in range(4): A(f"ds_write_b128 v6, {v(ACC+4*i,4)} offset:{1024*i}")
    for i in range(16): A(f"v_mov_b32 {v(ACC+i)}, {v(ACC+16+i)}")
    A(f"s_branch {name}_x1")
    A.label(f"{name}_x0")
    for i in range(4): A(f"ds_write_b128 v6, {v(ACC+16+4*i,4)} offset:{1024*i}")
    A.label(f"{name}_x1")
    A("s_waitcnt lgkmcnt(0)\ns_barrier")
    for i in range(4): A(f"ds_read_b128 {v(ACC+16+4*i,4)}, v7 offset:{1024*i}")
    A(f"s_lshl_b32 s39, s30, 2\ns_lshl_b32 s38, s36, 1\ns_add_u32 s39, s39, s38\ns_mul_i32 s39, s39, 28\ns_add_u32 s38, s39, s35\ns_lshl_b32 s38, s38, 10\ns_add_u32 s38, s38, {WS_HF}\ns_add_u32 s33, s38, {28*1024}")
    A("s_waitcnt lgkmcnt(0)")
    for i in range(8): A(f"v_pk_add_f32 {v(ACC+2*i,2)}, {v(ACC+2*i,2)}, {v(ACC+16+2*i,2)}")
    for tb in range(2):
        for bi in range(2):
            ac = ACC+(tb*2+bi)*4; zz = P1[(tb*2+bi)*2]; t = FB+(tb*2+bi)*6
            for h in range(2): A(f"v_cvt_pk_bf16_f32 {v(t+h)}, {v(ac+2*h)}, {v(ac+2*h+1)}")
            for h in range(2): A(f"v_lshlrev_b32 {v(ac+2*h)}, 16, {v(t+h)}\nv_and_b32 {v(ac+2*h+1)}, 0xffff0000, {v(t+h)}")
            for i in range(4): A(f"v_add_f32 {v(ac+i)}, {v(ac+i)}, {v(16+tb)}")
            for h in range(2): A(f"v_cvt_pk_bf16_f32 {v(t+h)}, {v(ac+2*h)}, {v(ac+2*h+1)}")
            for h in range(2): A(f"v_lshlrev_b32 {v(ac+2*h)}, 16, {v(t+h)}\nv_and_b32 {v(ac+2*h+1)}, 0xffff0000, {v(t+h)}")
            for h in range(2): A(f"v_lshlrev_b32 {v(t+2+2*h)}, 16, {v(zz+h)}\nv_and_b32 {v(t+3+2*h)}, 0xffff0000, {v(zz+h)}")
            for i in range(4): A(f"v_mul_f32 {v(ac+i)}, {v(ac+i)}, {v(t+2+i)}")
            for h in range(2): A(f"v_cvt_pk_bf16_f32 {v(zz+h)}, {v(ac+2*h)}, {v(ac+2*h+1)}")
        A(f"buffer_store_dwordx4 {v(P1[tb*4],4)}, v5, s[24:27], {'s33' if tb else 's38'} offen sc1")
    HR = 52; RED = 8192
    acc3 = lambda tb, j: 20+(tb*4+j)*4 if tb < 2 else 224+((tb-2)*4+j)*4
    A(f"s_lshr_b32 s32, s3, 1\ns_lshl_b32 s38, s30, 2\ns_add_u32 s38, s38, s32\ns_mul_i32 s67, s38, {16*896}\ns_lshl_b32 s38, s31, 7\ns_add_u32 s67, s67, s38\ns_and_b32 s38, s3, 1\ns_lshl_b32 s38, s38, 4\ns_add_u32 s67, s67, s38")
    A("v_mul_u32_u24 v18, 896, v3\nv_lshl_add_u32 v18, v4, 5, v18")
    A("buffer_load_dwordx4 v[12:15], v18, s[16:19], s67 offen")
    A(f"s_cmp_eq_u32 s3, 7\ns_cbranch_scc1 {name}_w7")
    A("s_lshl_b32 s39, s3, 2\ns_waitcnt vmcnt(1)")
    stp(3, "d")
    setflag("s96")
    for n_ in range(WL, 16):
        j = n_//4; ks = n_ % 4
        A(f"s_add_u32 s38, s47, {j*28*1024}\nbuffer_load_dwordx4 {v(WR+ks*16+j*4,4)}, v5, s[24:27], s38 offen offset:{ks*1024}")
    A("s_barrier")
    A(f"s_lshl_b32 s38, s30, 8\ns_lshl_b32 s33, s3, 5\ns_add_u32 s38, s38, s33\ns_add_u32 s38, s38, {WS_FL}")
    pollflags(8)
    stp(7); stp(5, "d")
    vm.q = []
    A(f"s_mul_i32 s38, s30, {4*28}\ns_add_u32 s38, s38, s39\ns_lshl_b32 s38, s38, 10\ns_add_u32 s38, s38, {WS_HF}")
    for tb in range(1, 4): A(f"s_add_u32 s{32+tb}, s38, {tb*28*1024}")
    for ks in range(4):
        for tb in range(4):
            A(f"buffer_load_dwordx4 {v(HR+ks*16+tb*4,4)}, v5, s[24:27], {'s38' if tb == 0 else 's%d' % (32+tb)} offen offset:{ks*1024}"); vm.issue(f"k{ks}{tb}")
    for ks in range(4):
        for tb in range(4):
            vm.wait(f"k{ks}{tb}")
            for j in range(4):
                ac = v(acc3(tb, j),4)
                A(f"v_mfma_f32_16x16x32_bf16 {ac}, {v(WR+ks*16+j*4,4)}, {v(HR+ks*16+tb*4,4)}, {'0' if ks == 0 else ac}")
    stp(6, "d")
    A(f"s_lshl_b32 s38, s3, 14\ns_add_u32 s38, s38, {RED}\nv_add_u32 v7, s38, v5\ns_nop 7")
    for tb in range(4):
        for j in range(4): A(f"ds_write_b128 v7, {v(acc3(tb, j),4)} offset:{(tb*4+j)*1024}")
    A(f"s_branch {name}_w7d")
    A.label(f"{name}_w7")
    A("s_waitcnt vmcnt(1)")
    setflag("s96")
    A("s_barrier")
    A(f"s_lshl_b32 s38, s31, 10\ns_lshr_b32 s33, s30, 3\ns_lshl_b32 s33, s33, 8\ns_add_u32 s38, s38, s33\ns_add_u32 s38, s38, {WS_FL+16384}")
    pollflags(64)
    A(f"v_lshrrev_b32 v6, 3, v1\nv_and_b32 v7, 7, v1\nv_lshlrev_b32 v6, 12, v6\nv_lshl_add_u32 v6, v7, 4, v6")
    A(f"s_lshl_b32 s38, s31, 18\ns_lshl_b32 s33, s30, 7\ns_add_u32 s38, s38, s33\ns_add_u32 s38, s38, {WS_AT}")
    for i in range(8):
        A(f"s_mov_b32 m0, {i*1024}\ns_nop 0\nbuffer_load_dwordx4 v6, s[24:27], s38 offen lds\ns_add_u32 s38, s38, {8*4096}")
    A.label(f"{name}_w7d")
    A("v_bfe_u32 v6, v1, 2, 2\nv_lshl_add_u32 v6, v4, 4, v6\nv_lshlrev_b32 v6, 7, v6\nv_and_b32 v7, 3, v1\nv_lshl_add_u32 v6, v7, 3, v6\ns_lshl_b32 s38, s32, 5\ns_and_b32 s33, s3, 1\ns_lshl_b32 s33, s33, 10\ns_add_u32 s38, s38, s33\nv_add_u32 v6, s38, v6")
    srd(A, 20, 62, 2048*896)
    A(f"s_lshl_b32 s38, s3, 11\ns_add_u32 s38, s38, {RED}\nv_add_u32 v7, s38, v5\nv_add_u32 v8, 65536, v7")
    A("s_waitcnt vmcnt(0) lgkmcnt(0)\ns_barrier")
    stp(7, "d")
    for sw in range(7):
        for jj in range(2): A(f"ds_read_b128 {v(52+sw*8+jj*4,4)}, {'v7' if sw < 4 else 'v8'} offset:{(sw%4)*16384+jj*1024}")
    for jj in range(2): A(f"ds_read_b64_tr_b16 {v(112+2*jj,2)}, v6 offset:{jj*512}")
    for i in range(4): A(f"v_lshlrev_b32 {v(20+2*i)}, 16, {v(12+i)}\nv_and_b32 {v(21+2*i)}, 0xffff0000, {v(12+i)}")
    A("s_waitcnt lgkmcnt(0)")
    for i in range(4):
        A(f"v_lshlrev_b32 {v(28+2*i)}, 16, {v(112+i)}\nv_and_b32 {v(29+2*i)}, 0xffff0000, {v(112+i)}\nv_pk_add_f32 {v(20+2*i,2)}, {v(20+2*i,2)}, {v(28+2*i,2)}")
        A(f"v_cvt_pk_bf16_f32 {v(12+i)}, {v(20+2*i)}, {v(21+2*i)}\nv_lshlrev_b32 {v(20+2*i)}, 16, {v(12+i)}\nv_and_b32 {v(21+2*i)}, 0xffff0000, {v(12+i)}")
        p = lambda sw: v(52+sw*8+2*i,2)
        A(f"v_pk_add_f32 {p(0)}, {p(0)}, {p(1)}\nv_pk_add_f32 {p(2)}, {p(2)}, {p(3)}\nv_pk_add_f32 {p(4)}, {p(4)}, {p(5)}\nv_pk_add_f32 {p(0)}, {p(0)}, {p(2)}\nv_pk_add_f32 {p(4)}, {p(4)}, {p(6)}\nv_pk_add_f32 {p(0)}, {p(0)}, {p(4)}")
        A(f"v_cvt_pk_bf16_f32 {v(12+i)}, {v(52+2*i)}, {v(53+2*i)}\nv_lshlrev_b32 {v(52+2*i)}, 16, {v(12+i)}\nv_and_b32 {v(53+2*i)}, 0xffff0000, {v(12+i)}")
        A(f"v_pk_add_f32 {v(52+2*i,2)}, {v(52+2*i,2)}, {v(20+2*i,2)}\nv_cvt_pk_bf16_f32 {v(12+i)}, {v(52+2*i)}, {v(53+2*i)}")
    A("buffer_store_dwordx4 v[12:15], v18, s[20:23], s67 offen")
    if STAMPS: A("s_waitcnt vmcnt(0)"); stp(1)
    A("s_endpgm")
    A.label(f"{name}_prep")
    srd(A, 16, 12, 896*896)
    srd(A, 24, 10, WS_END)
    srd(A, 20, 14, 2048*4096)
    A(f"s_sub_u32 s30, s2, {NG}\ns_mul_i32 s31, s30, {32*896}\nv_lshlrev_b32 v3, 4, v0")
    A(f"v_mov_b32 v8, 0\nv_mov_b32 v9, 0\nv_mov_b32 v10, 0\nv_mov_b32 v11, 0\nv_mov_b32 v12, -1\nv_mov_b32 v13, -1\nv_mov_b32 v14, -1\nv_mov_b32 v15, -1")
    A(f"s_lshl_b32 s32, s30, 10\ns_add_u32 s32, s32, {WS_FL-4096}\ns_mul_i32 s33, s30, 3584\ns_add_u32 s33, s33, {WS_STAT}")
    A(f"s_cmp_lg_u32 s3, 4\ns_cbranch_scc1 {name}_cl1\nbuffer_store_dwordx4 v[8:11], v3, s[24:27], s32 offen sc1")
    A.label(f"{name}_cl1")
    A(f"s_cmp_ge_u32 s3, 4\ns_cbranch_scc1 {name}_cl2\nv_cmp_gt_u32 vcc, 224, v0\ns_and_saveexec_b64 s[40:41], vcc\nbuffer_store_dwordx4 v[12:15], v3, s[24:27], s33 offen sc1\ns_mov_b64 exec, s[40:41]")
    A.label(f"{name}_cl2")
    A(f"s_waitcnt vmcnt(0)\ns_barrier\ns_cmp_lg_u32 s3, 0\ns_cbranch_scc1 {name}_cl3")
    A("v_mov_b32 v6, s30\nv_mov_b32 v7, 1\ns_mov_b64 exec, 1\nglobal_store_byte v6, v7, s[8:9] sc1\ns_mov_b64 exec, -1")
    A.label(f"{name}_cl3")
    stp(2, "p")
    WP0 = int(os.environ.get("WP0", "12"))
    if WP0 < 28:
        srd(A, 80, 6, 448*3584)
        A("s_and_b32 s32, s30, 1\ns_lshl_b32 s32, s32, 2\ns_lshr_b32 s33, s30, 3\ns_add_u32 s32, s32, s33\ns_cmp_eq_u32 s33, 3\ns_cselect_b32 s32, 3, s32\ns_lshl_b32 s32, s32, 8")
        A(f"s_add_u32 s32, s32, {WP0*16*3584}\nv_lshrrev_b32 v4, 5, v0\nv_mul_u32_u24 v4, 3584, v4\nv_bfe_u32 v5, v0, 4, 1\nv_mul_u32_u24 v5, 1792, v5\nv_and_b32 v6, 15, v0\nv_lshl_add_u32 v4, v6, 4, v4\nv_add_u32 v4, v4, v5")
        for n in range(WP0, 28):
            A(f"buffer_load_dwordx4 {v(24+4*n,4)}, v4, s[80:83], s32 offen\ns_add_u32 s32, s32, {16*3584}")
    A(f"s_cmp_ge_u32 s30, 28\ns_cbranch_scc1 {name}_pf")
    for i in range(4):
        if i == 3: A("v_cmp_gt_u32 vcc, 256, v0\ns_and_saveexec_b64 s[40:41], vcc")
        A(f"s_add_u32 s32, s31, {i*8192}\nbuffer_load_dwordx4 {v(8+4*i,4)}, v3, s[16:19], s32 offen")
    A("s_waitcnt vmcnt(0)\nds_write_b128 v3, v[20:23] offset:24576\ns_mov_b64 exec, s[40:41]")
    for i in range(3): A(f"ds_write_b128 v3, {v(8+4*i,4)} offset:{i*8192}")
    A("s_waitcnt lgkmcnt(0)\ns_barrier")
    A("v_lshrrev_b32 v4, 2, v1\nv_mul_u32_u24 v4, 896, v4\nv_and_b32 v5, 3, v1\nv_lshl_add_u32 v4, v5, 5, v4\ns_lshr_b32 s32, s3, 2\ns_lshl_b32 s32, s32, 7\ns_and_b32 s33, s3, 3\ns_lshl_b32 s33, s33, 3\ns_add_u32 s32, s32, s33\nv_add_u32 v4, s32, v4")
    A(f"v_lshlrev_b32 v5, 4, v1\ns_mul_i32 s33, s3, {28*1024}\ns_lshl_b32 s34, s30, 10\ns_add_u32 s33, s33, s34\ns_add_u32 s33, s33, {WS_WOF}")
    for i in range(4):
        if i == 3: A(f"s_cmp_ge_u32 s3, 4\ns_cbranch_scc1 {name}_pf")
        A(f"ds_read_b64_tr_b16 {v(8+4*i,2)}, v4 offset:{i*256}\nds_read_b64_tr_b16 {v(10+4*i,2)}, v4 offset:{i*256+16*896}")
        A(f"s_add_u32 s34, s33, {i*8*28*1024}\ns_waitcnt lgkmcnt(0)\nbuffer_store_dwordx4 {v(8+4*i,4)}, v5, s[24:27], s34 offen sc1")
    A.label(f"{name}_pf")
    A(f"s_cmp_ge_u32 s30, 28\ns_cbranch_scc1 {name}_pf2")
    A(f"s_waitcnt vmcnt(0)\ns_barrier\ns_cmp_lg_u32 s3, 0\ns_cbranch_scc1 {name}_pf2")
    A("v_and_b32 v21, 7, v1\nv_lshlrev_b32 v21, 2, v21\nglobal_load_dword v28, v21, s[8:9] sc1\ns_waitcnt vmcnt(0)")
    check(28, "global_load_dword v28, v21, s[8:9] sc1", cmpv="0x01010101")
    A(f"s_lshl_b32 s33, s30, 2\ns_add_u32 s33, s33, {WS_FL+31744}"); setflag("s33")
    A.label(f"{name}_pf2")
    PFS = int(os.environ.get("PFS", "100"))
    if PFS < 0: A("s_endpgm")
    while PFS > 0: A(f"s_sleep {min(PFS,127)}"); PFS -= 127
    PFG = int(os.environ.get("PFG", "0"))
    A("s_and_b32 s32, s30, 7\ns_lshr_b32 s32, s32, 1\ns_lshl_b32 s32, s32, 2\ns_lshr_b32 s33, s30, 3\ns_add_u32 s32, s32, s33\ns_lshl_b32 s32, s32, 19")
    PFW = int(os.environ.get("PFW", "4096")); lpr = PFW//16; rows = 512//lpr; ng = 128//rows
    A(f"v_lshrrev_b32 v4, {lpr.bit_length()-1}, v0\nv_lshlrev_b32 v4, 12, v4\nv_and_b32 v5, {lpr-1}, v0\nv_lshl_add_u32 v4, v5, 4, v4")
    for i in range(64):
        if i >= 48: A("s_waitcnt vmcnt(47)")
        if PFG: A(f"s_sleep {PFG}")
        A(f"s_add_u32 s33, s32, {(i%ng)*rows*4096 + (i//ng)*PFW}\nbuffer_load_dwordx4 {v(24+4*(i%48),4)}, v4, s[20:23], s33 offen")
    A("s_waitcnt vmcnt(0)")
    stp(1)
    A.label(f"{name}_end")
    A.end_kernel(name, 256, sgpr=102)
    A.launch(name, NG+NAUX, 512, LDS)
```
